```python
import torch

def _softmax(x, axis=-1):
    return torch.softmax(x, dim=axis)
def _gelu(x):
    return torch.nn.functional.gelu(x, approximate="tanh")
def _silu(x):
    return torch.nn.functional.silu(x)
def _sigmoid(x):
    return torch.sigmoid(x)
def _layernorm(x, axis=-1, eps=1e-5):
    m = x.mean(dim=axis, keepdim=True)
    v = x.var(dim=axis, keepdim=True, unbiased=False)
    return (x - m) / torch.sqrt(v + eps)
def _scatter_add(tgt, idx, src, axis=0):
    return tgt.clone().index_add_(axis, idx, src)
def _segment_sum(src, seg, n):
    out = torch.zeros((n,) + src.shape[1:], dtype=src.dtype)
    return out.index_add_(0, seg, src)
def _pad(x, pw):
    flat = tuple(v for pair in reversed(pw) for v in pair)
    return torch.nn.functional.pad(x, flat)

kernel_name = 'gated_mix__compressed_kv_cla__linear_kernel_hedgehog__prompt'

def setup_inputs():

    _w = (lambda a: (lambda t: t.to(torch.bfloat16) if t.is_floating_point() else t)(torch.as_tensor(a)))
    def _A_setup():
        B, H, Sq, Sk, D, M = 1, 32, 2048, 2048, 128, 576
        Dc = 4 * D
        return {
            "x": _w((lambda *s: torch.randn(*s, dtype=torch.bfloat16) * 0.05)(B, Sq, M)),
            "c_kv": _w((lambda *s: torch.randn(*s, dtype=torch.bfloat16) * 0.4)(B, Sk, Dc)),
            "w_q": _w((lambda *s: torch.randn(*s, dtype=torch.bfloat16) * 6.4)(M, H, D) * (M ** -0.5)),
            "w_uk": _w((lambda *s: torch.randn(*s, dtype=torch.bfloat16) * 6.4)(Dc, H, D) * (Dc ** -0.5)),
            "w_uv": _w((lambda *s: torch.randn(*s, dtype=torch.bfloat16) * 0.4)(Dc, H, D) * (Dc ** -0.5)),
            "w_o": _w((lambda *s: torch.randn(*s, dtype=torch.bfloat16) * 0.4)(H, D, M) * ((H * D) ** -0.5)),
        }
    _A_in = _A_setup()

    def _B_setup():
        B, S, D, H = 1, 2048, 576, 32
        Dh = D // H
        return {
            "x": _w((lambda *s: torch.randn(*s, dtype=torch.bfloat16) * 0.05)(B, S, D)),
            "wqkv": _w((lambda *s: torch.randn(*s, dtype=torch.bfloat16) * 0.8)(D, 3 * D)),
            "w_phi": _w((lambda *s: torch.randn(*s, dtype=torch.bfloat16) * 0.8)(H, Dh, Dh) * (Dh ** -0.5)),
            "wo": _w((lambda *s: torch.randn(*s, dtype=torch.bfloat16) * 0.05)(D, D)),
        }
    _B_in = _B_setup()

    return {
        "A_x": _A_in["x"],
        "A_c_kv": _A_in["c_kv"],
        "A_w_q": _A_in["w_q"],
        "A_w_uk": _A_in["w_uk"],
        "A_w_uv": _A_in["w_uv"],
        "A_w_o": _A_in["w_o"],
        "B_x": _B_in["x"],
        "B_wqkv": _B_in["wqkv"],
        "B_w_phi": _B_in["w_phi"],
        "B_wo": _B_in["wo"],
        "gate_w": _w((lambda *s: torch.randn(*s, dtype=torch.bfloat16) * 0.05)(576) * 16.0),
    }

def reference(A_x, A_c_kv, A_w_q, A_w_uk, A_w_uv, A_w_o, B_x, B_wqkv, B_w_phi, B_wo, gate_w):
    def _A_ref(x, c_kv, w_q, w_uk, w_uv, w_o):
        B, Sq, M = x.shape[0], x.shape[1], x.shape[2]
        Sk = c_kv.shape[1]
        H, D = w_q.shape[1], w_q.shape[2]
        q = torch.einsum("bqm,mhd->bhqd", x, w_q)
        k = torch.einsum("bkc,chd->bhkd", c_kv, w_uk)
        v = torch.einsum("bkc,chd->bhkd", c_kv, w_uv)
        scores = torch.einsum("bhqd,bhkd->bhqk", q, k) * (D ** -0.5)
        off = Sk - Sq
        qi = torch.arange(Sq)[:, None]
        kj = torch.arange(Sk)[None, :]
        cmask = kj <= (qi + off)
        scores = torch.where(cmask[None, None], scores, -1e9)
        p = _softmax(scores, axis=-1)
        ctx = torch.einsum("bhqk,bhkd->bhqd", p, v)
        return torch.einsum("bhqd,hdm->bqm", ctx, w_o)

    def _B_ref(x, wqkv, w_phi, wo):
        B, S, D = x.shape
        H = 32; Dh = D // H
        qkv = (lambda x, *d: x.permute(*d))((x @ wqkv).reshape(B, S, 3, H, Dh), 2, 0, 3, 1, 4)
        q, k, v = qkv[0], qkv[1], qkv[2]
        pq = torch.einsum("bhsd,hdf->bhsf", q, w_phi)
        pk = torch.einsum("bhsd,hdf->bhsf", k, w_phi)
        phi_q = torch.concatenate([_softmax(pq, axis=-1), _softmax(-pq, axis=-1)], axis=-1)
        phi_k = torch.concatenate([_softmax(pk, axis=-1), _softmax(-pk, axis=-1)], axis=-1)
        kv = torch.einsum("bhsf,bhsd->bhfd", phi_k, v)
        z  = torch.einsum("bhsf->bhf", phi_k)
        num = torch.einsum("bhqf,bhfd->bhqd", phi_q, kv)
        den = torch.einsum("bhqf,bhf->bhq", phi_q, z)[..., None] + 1e-6
        o = num / den
        return (lambda x, *d: x.permute(*d))(o, 0, 2, 1, 3).reshape(B, S, D) @ wo

    x = A_x
    g = _sigmoid((x * gate_w).sum(-1, keepdims=True))
    a = _A_ref(x, A_c_kv, A_w_q, A_w_uk, A_w_uv, A_w_o)
    b = _B_ref(x, B_wqkv, B_w_phi, B_wo)
    return g * a + (1 - g) * b
```

```python
KA_X, KA_C, KA_WQ, KA_WUK, KA_WUV, KA_WO, KA_BX, KA_WQKV, KA_WPHI, KA_BWO, KA_GATE, KA_OUT, KA_DBG, KA_WS = [8*i for i in range(14)]
SZ_X = 2048*576*2; SZ_C = 2048*512*2; SZ_WQ = 576*4096*2; SZ_WU = 512*4096*2; SZ_WO = 4096*576*2
SZ_WQKV = 576*1728*2; SZ_WPHI = 32*18*18*2; SZ_BWO = 576*576*2; SZ_GATE = 576*2; SZ_OUT = 2048*576*2
WS_KV = 0;            SZ_KV = 32*32*32768
WS_CF = 0x2000000;    NCH = 146; SZ_CF = 128*NCH*1024
WS_XF = 0x3400000;    SZ_XF = 128*18*1024
WS_PQ = 0x3800000;    SZ_PQ = 32*2048*72
WS_KVP = 0x3E00000;   KVP_ROW = 160; KVP_PART = 19*KVP_ROW; SZ_KVP = 32*8*KVP_PART
WS_G = 0x3F00000;     SZ_G = 2048*4
OOB = 0x7FFFFF00
LOG2E = 1.4426950408889634
import struct
def f32(x): return "0x%08x" % struct.unpack("<I", struct.pack("<f", x))[0]

def srd(b, d, base, size, add=None):
    if add:
        b.e(f"s_add_u32 s{d}, s{base}, {add}\ns_addc_u32 s{d+1}, s{base+1}, 0")
    else:
        b.e(f"s_mov_b32 s{d}, s{base}\ns_mov_b32 s{d+1}, s{base+1}")
    b.e(f"s_mov_b32 s{d+2}, {size}\ns_mov_b32 s{d+3}, 0x00020000")
```

```python
import re

def v(n, c=1): return f"v{n}" if c == 1 else f"v[{n}:{n+c-1}]"
def a(n, c=1): return f"a{n}" if c == 1 else f"a[{n}:{n+c-1}]"
def s(n, c=1): return f"s{n}" if c == 1 else f"s[{n}:{n+c-1}]"
def R(r, c=1, off=0):
    return (v if r[0] == 'v' else a)(r[1] + off, c)

_REG = re.compile(r'^(-?)(?:abs\()?([vas])(?:(\d+)|\[(\d+):(\d+)\])\)?$')
def regs_of(tok):
    tok = tok.strip()
    if tok in ('vcc', 'exec', 'm0', 'scc'): return [tok]
    if tok in ('vcc_lo', 'vcc_hi'): return ['vcc']
    if tok in ('exec_lo', 'exec_hi'): return ['exec']
    m = _REG.match(tok)
    if not m: return []
    k = m.group(2)
    if m.group(3) is not None: return [f"{k}{m.group(3)}"]
    return [f"{k}{i}" for i in range(int(m.group(4)), int(m.group(5)) + 1)]

TRANS = ('v_exp_f32', 'v_log_f32', 'v_rcp_f32', 'v_rsq_f32', 'v_sqrt_f32')

class I:
    __slots__ = ('text', 'op', 'kind', 'wr', 'rd', 'cost', 'passes', 'tag', 'C', 'D', 'AB', 'wait', 'target', 'data', 'note')
    def __init__(self, text, tag=None):
        self.text = text.strip(); self.tag = tag; self.passes = 0; self.C = (); self.D = (); self.AB = ()
        self.wait = None; self.target = None; self.data = (); self.note = None
        t = self.text.split(';')[0].strip()
        if t.endswith(':'):
            self.op = 'label'; self.kind = 'label'; self.wr = set(); self.rd = set(); self.cost = 0; self.target = t[:-1]; return
        parts = t.split(None, 1)
        op = parts[0]; self.op = op
        rest = parts[1] if len(parts) > 1 else ''
        ops = [x.strip() for x in rest.split(',')] if rest else []
        mods = []
        if ops:
            lp = ops[-1].split()
            ops[-1] = lp[0] if lp else ''
            mods = lp[1:]
        rr = [regs_of(o) for o in ops]
        flat = lambda L: set(x for l in L for x in l)
        wr = set(); rd = set(); cost = 4
        if op.startswith('v_mfma'):
            kind = 'mfma'; self.passes = 8 if '32x32' in op else 4
            self.D = tuple(rr[0]); self.AB = tuple(rr[1] + rr[2]); self.C = tuple(rr[3])
            wr = set(rr[0]); rd = flat(rr[1:]); cost = 8
        elif op.startswith('v_cmp'):
            kind = 'valu'; wr = set(rr[0]); rd = flat(rr[1:])
            if op.startswith('v_cmpx'): wr.add('exec')
        elif op.startswith('v_permlane') and 'swap' in op:
            kind = 'valu'; wr = flat(rr); rd = flat(rr)
        elif op.startswith('v_readfirstlane') or op.startswith('v_readlane'):
            kind = 'valu'; wr = set(rr[0]); rd = flat(rr[1:])
        elif op.startswith('v_'):
            kind = 'trans' if op.replace('_e32', '').replace('_e64', '') in TRANS else 'valu'
            wr = set(rr[0]); rd = flat(rr[1:])
            if op.startswith(('v_fmac', 'v_dot2c', 'v_mac')): rd |= wr
            if op.startswith(('v_add_co', 'v_sub_co', 'v_addc_co', 'v_subb_co')): wr |= set(rr[1]);
            if kind == 'trans': cost = 8
        elif op.startswith('ds_read') or op.startswith('ds_bpermute') or op.startswith('ds_swizzle'):
            kind = 'dsr'; wr = set(rr[0]); rd = flat(rr[1:])
        elif op.startswith('ds_write') or op.startswith('ds_add'):
            kind = 'dsw'; rd = flat(rr)
        elif op.startswith('buffer_load') or op.startswith('global_load'):
            if 'lds' in mods or '_lds_' in op:
                kind = 'dma'; rd = flat(rr) | {'m0'}
            else:
                kind = 'vld'; wr = set(rr[0]); rd = flat(rr[1:])
        elif op.startswith('buffer_store') or op.startswith('global_store'):
            kind = 'vst'; rd = flat(rr); self.data = tuple(rr[0]) if op.startswith('buffer') else tuple(rr[1])
        elif op.startswith('buffer_atomic') or op.startswith('global_atomic'):
            kind = 'vst'; rd = flat(rr)
            if 'sc0' in mods: wr = set(rr[0]); kind = 'vld'
        elif op in ('buffer_inv', 'buffer_wbl2'):
            kind = 'vst'
        elif op.startswith('s_load') or op.startswith('s_buffer_load') or op in ('s_memtime', 's_memrealtime'):
            kind = 'smem'; wr = set(rr[0]); rd = flat(rr[1:])
        elif op == 's_waitcnt': kind = 'wait'
        elif op == 's_barrier': kind = 'barrier'
        elif op == 's_nop': kind = 'nop'; cost = 4
        elif op in ('s_endpgm',): kind = 'end'
        elif op in ('s_setprio', 's_sleep'): kind = 'salu'
        elif op.startswith('s_cbranch') or op == 's_branch':
            kind = 'branch'; self.target = ops[0]
            if 'vcc' in op: rd = {'vcc'}
            if 'scc' in op: rd = {'scc'}
            if 'exec' in op: rd = {'exec'}
        elif op.startswith('s_cmp') or op.startswith('s_bitcmp'):
            kind = 'salu'; rd = flat(rr); wr = {'scc'}
        elif op.startswith('s_'):
            kind = 'salu'; wr = set(rr[0]); rd = flat(rr[1:])
            if 'saveexec' in op: wr.add('exec'); rd.add('exec')
            if op.startswith(('s_cselect', 's_addc', 's_subb')): rd.add('scc')
            if not op.startswith(('s_mov', 's_mul', 's_cselect', 's_getreg', 's_setreg')): wr.add('scc')
        elif op.startswith('WAIT'):
            kind = 'pwait'; cost = 4
        else:
            raise ValueError("unknown op " + text)
        self.kind = kind; self.wr = wr; self.rd = rd; self.cost = cost
    def states(self):
        if self.kind == 'label': return 0
        if self.kind == 'nop': return int(self.text.split()[1]) + 1
        return 1
    def __repr__(self): return self.text

def W(vm=None, lg=None):
    i = I('WAIT'); i.wait = (vm, lg); return i

VM_KINDS = ('vld', 'vst', 'dma'); LG_KINDS = ('dsr', 'dsw', 'smem')

def _need(q, want):
    if want is None: return None
    if want == 'all': return 0
    if not isinstance(want, (list, tuple, set)): want = [want]
    last = -1
    for k, t in enumerate(q):
        if t in want: last = k
    if last < 0: return None
    return len(q) - 1 - last

def resolve(items, vmq=None, lgq=None):
    vmq = list(vmq or []); lgq = list(lgq or []); out = []
    for it in items:
        if it.kind == 'pwait':
            nv = _need(vmq, it.wait[0]); nl = _need(lgq, it.wait[1])
            if it.wait[0] == 'all' and not vmq: nv = None
            if it.wait[1] == 'all' and not lgq: nl = None
            p = []
            if nv is not None:
                nv = min(nv, 63); p.append(f"vmcnt({nv})"); vmq = vmq[len(vmq) - nv:] if nv else []
            if nl is not None:
                nl = min(nl, 15); p.append(f"lgkmcnt({nl})"); lgq = lgq[len(lgq) - nl:] if nl else []
            if p: out.append(I("s_waitcnt " + " ".join(p)))
            continue
        if it.kind == 'wait':
            m = re.search(r'vmcnt\((\d+)\)', it.text)
            if m: n = int(m.group(1)); vmq = vmq[max(0, len(vmq) - n):] if n else []
            m = re.search(r'lgkmcnt\((\d+)\)', it.text)
            if m: n = int(m.group(1)); lgq = lgq[max(0, len(lgq) - n):] if n else []
        if it.kind in VM_KINDS and it.note != 'cond': vmq.append(it.tag)
        if it.kind in LG_KINDS: lgq.append(it.tag)
        out.append(it)
    return out, vmq, lgq

def _is_valu(i): return i.kind in ('valu', 'trans')
def _sg(x): return x[0] == 's' or x == 'vcc'

def required(p, c):
    n = 0
    if p.kind == 'mfma':
        D = set(p.D); ps = p.passes
        big = {4: 8, 8: 12}[ps]
        if c.kind == 'mfma':
            if D & set(c.AB): n = max(n, big)
            if D & set(c.C):
                if not (tuple(c.C) == tuple(p.D) and c.passes == ps): n = max(n, {4: 6, 8: 10}[ps])
            elif D & set(c.D): n = max(n, big)
        elif c.kind in ('valu', 'trans', 'dsr', 'dsw', 'vld', 'vst', 'dma'):
            if D & (c.rd | c.wr): n = max(n, big)
        if _is_valu(c) and (set(p.C) & c.wr): n = max(n, {4: 3, 8: 7}[ps])
    elif _is_valu(p):
        vw = set(x for x in p.wr if x[0] in 'va' and x != 'vcc')
        sw = set(x for x in p.wr if _sg(x))
        if c.kind == 'mfma':
            if vw & c.rd: n = max(n, 2)
            if 'exec' in p.wr: n = max(n, 4)
        if _is_valu(c):
            if p.kind == 'trans' and c.kind != 'trans' and (vw & c.rd): n = max(n, 1)
            if p.kind == 'trans' and (vw & c.rd): n = max(n, 1)
            if sw & c.rd: n = max(n, 4 if c.op.startswith(('v_readlane', 'v_writelane')) else 2)
            if c.op.startswith(('v_readfirstlane', 'v_readlane')) and (vw & c.rd): n = max(n, 1)
            if c.op.startswith('v_permlane') and (vw & c.rd): n = max(n, 2)
            if ('dpp' in c.text or 'row_' in c.text or 'quad_perm' in c.text) and (vw & c.rd): n = max(n, 2)
            if 'exec' in p.wr and c.op.startswith(('v_readfirstlane', 'v_readlane', 'v_permlane')): n = max(n, 4)
        if c.kind in VM_KINDS and (sw & c.rd): n = max(n, 5)
        if c.kind == 'salu' and (sw & c.rd): n = max(n, 1)
    elif p.kind == 'salu':
        if 'm0' in p.wr and c.kind == 'dma': n = max(n, 1)
    elif p.kind == 'vst':
        if len(p.data) >= 3 and (set(p.data) & c.wr): n = max(n, 2 if _is_valu(c) else 1)
    return n

MAXD = 13
def fix_hazards(items, verbose=False, name=''):
    items = list(items); added = 0
    changed = True
    while changed:
        changed = False
        lab = {it.target: k for k, it in enumerate(items) if it.kind == 'label'}
        brs = {}
        for k, it in enumerate(items):
            if it.kind == 'branch' and it.target in lab: brs.setdefault(lab[it.target], []).append(k)
        def preds(k):
            r = []
            if k > 0 and not (items[k-1].op == 's_branch' or items[k-1].kind == 'end'): r.append(k - 1)
            if items[k].kind == 'label': r += brs.get(k, [])
            return r
        for k, c in enumerate(items):
            if c.kind in ('label', 'nop', 'wait', 'barrier', 'branch', 'end'): continue
            short = 0; why = None
            stack = [(p, 0) for p in preds(k)]; seen = set()
            while stack:
                p, d = stack.pop()
                if (p, d) in seen or d >= MAXD: continue
                seen.add((p, d))
                n = required(items[p], c)
                if n - d > short: short = n - d; why = items[p]
                nd = d + items[p].states()
                for q in preds(p): stack.append((q, nd))
            if short > 0:
                if verbose: print(f"[{name}] nop {short} before '{c.text}' (after '{why.text}')")
                nop = I(f"s_nop {short-1}"); items.insert(k, nop); added += short; changed = True
                break
    return items, added

def check_trace(trace, name=''):
    vm = []; lg = []; errs = 0
    for k, it in enumerate(trace):
        if it.kind == 'label': continue
        if it.kind == 'wait':
            m = re.search(r'vmcnt\((\d+)\)', it.text)
            if m: n = int(m.group(1)); vm = vm[max(0, len(vm) - n):] if n else []
            m = re.search(r'lgkmcnt\((\d+)\)', it.text)
            if m: n = int(m.group(1)); lg = lg[max(0, len(lg) - n):] if n else []
            continue
        touched = it.rd | it.wr
        for q in (vm, lg):
            for p in q:
                if p.wr & touched and not (p.kind == 'dsr' and it.kind == 'dsr' and not (p.wr & it.rd)):
                    print(f"[{name}] UNWAITED: '{it.text}' touches result of '{p.text}'"); errs += 1
        if it.kind in VM_KINDS and it.note != 'cond': vm.append(it)
        if it.kind in LG_KINDS: lg.append(it)
        d = 0; j = k - 1
        while j >= 0 and d < MAXD:
            n = required(trace[j], it)
            if n > d: print(f"[{name}] HAZARD {n}>{d}: '{trace[j].text}' -> '{it.text}'"); errs += 1
            d += trace[j].states(); j -= 1
    return errs

class B:
    def __init__(self): self.L = []
    def e(self, text, tag=None):
        for line in text.strip().split('\n'):
            line = line.strip()
            if not line or line.startswith(';'): continue
            self.L.append(I(line, tag))
        return self
    def add(self, x):
        if isinstance(x, I): self.L.append(x)
        elif isinstance(x, B): self.L += x.L
        else: self.L += list(x)
        return self
    def w(self, vm=None, lg=None): self.L.append(W(vm, lg)); return self

def weave(mf, pinned=None, streams=(), budget=24):
    n = len(mf)
    slots = {g: list((pinned or {}).get(g, [])) for g in range(-1, n)}
    used = {g: sum(i.cost for i in slots[g]) for g in slots}
    for lst, g0, g1 in streams:
        atoms = [x if isinstance(x, (list, tuple)) else [x] for x in lst]
        tot = sum(i.cost for at in atoms for i in at)
        gaps = list(range(g0, g1 + 1))
        room = [max(0, budget - used[g]) for g in gaps]
        R_ = sum(room)
        if R_ == 0: room = [1] * len(gaps); R_ = len(gaps)
        cum = 0; acc = 0; k = 0
        for gi, g in enumerate(gaps):
            acc += room[gi] * tot / R_
            while k < len(atoms) and (cum + sum(i.cost for i in atoms[k]) / 2 <= acc or gi == len(gaps) - 1):
                slots[g] += atoms[k]; c = sum(i.cost for i in atoms[k]); cum += c; used[g] += c; k += 1
    out = list(slots[-1])
    for g in range(n):
        out.append(mf[g]); out += slots[g]
    return out, used

def text(items):
    return "\n".join((it.text if it.kind == 'label' else "    " + it.text) for it in items)

def kernel_wrap(name, body_text):
    return f""".globl {name}
.p2align 8
.type {name},@function
{name}:
{body_text}
"""
def kd(name, nvgpr=512, accum=256, nsgpr=102):
    return f""".p2align 6
.amdhsa_kernel {name}
  .amdhsa_next_free_vgpr {nvgpr}
  .amdhsa_next_free_sgpr {nsgpr}
  .amdhsa_accum_offset {accum}
  .amdhsa_group_segment_fixed_size 0
  .amdhsa_kernarg_size 112
  .amdhsa_user_sgpr_count 2
  .amdhsa_user_sgpr_kernarg_segment_ptr 1
  .amdhsa_system_sgpr_workgroup_id_x 1
.end_amdhsa_kernel
"""
```

```python
from core import *
from consts import *

STPOL = ""

def gen_k1(name="k1", do_b=True, stpol=STPOL):
    b = B()
    sH, sKB, sW = 20, 21, 22
    sCB, sM0C, sWB, sM0W, sT, sT2 = 23, 24, 25, 26, 27, 28
    sKVB = 29
    SC, SWT, SKV, SX, SWB, SPHI, SGATE, SXF, SPQ, SKVP, SG = 32, 36, 40, 44, 48, 52, 56, 60, 64, 68, 72
    sXB, sM0X = 76, 77
    b.e(f"""
    s_cmp_ge_u32 s2, 256
    s_cbranch_scc1 {name}_end
    s_load_dwordx4 s[4:7], s[0:1], {KA_X}
    s_load_dwordx4 s[8:11], s[0:1], {KA_WUK}
    s_load_dwordx4 s[12:15], s[0:1], {KA_WQKV}
    s_load_dwordx2 s[16:17], s[0:1], {KA_GATE}
    s_load_dwordx2 s[18:19], s[0:1], {KA_WS}
    v_lshrrev_b32 v2, 6, v0
    v_and_b32 v1, 63, v0
    v_readfirstlane_b32 s{sW}, v2
    s_and_b32 s{sH}, s2, 7
    s_lshl_b32 s{sH}, s{sH}, 2
    s_bfe_u32 s{sT}, s2, 0x20003
    s_add_u32 s{sH}, s{sH}, s{sT}
    s_lshr_b32 s{sKB}, s2, 5
    """)
    b.e("""
    v_and_b32 v2, 15, v1
    v_lshrrev_b32 v3, 4, v1
    v_and_b32 v4, 7, v1
    v_lshrrev_b32 v5, 3, v1
    v_and_b32 v6, 3, v1
    v_bfe_u32 v7, v1, 2, 2
    """)
    vDC, vDW, vRC, vRW, vSK, vSV = 8, 10, 12, 18, 22, 23
    vt0, vt1 = 24, 25
    b.e(f"""
    v_xor_b32 v{vt0}, v4, v3
    v_lshlrev_b32 v{vt0}, 4, v{vt0}
    v_lshl_add_u32 v{vDC}, v5, 10, v{vt0}
    v_xor_b32 v{vDC+1}, 64, v{vDC}
    """)
    b.e(f"""
    v_lshlrev_b32 v{vt0}, 1, v3
    v_xor_b32 v{vt0}, v2, v{vt0}
    v_lshlrev_b32 v{vt0}, 4, v{vt0}
    v_lshl_add_u32 v{vDW}, v3, 13, v{vt0}
    s_lshl_b32 s{sT}, s{sH}, 8
    v_add_u32 v{vDW}, s{sT}, v{vDW}
    v_xor_b32 v{vDW+1}, 128, v{vDW}
    """)
    b.e("s_waitcnt lgkmcnt(0)")
    srd(b, SC, 6, SZ_C)
    b.e(f"""
    s_cmp_lt_u32 s{sW}, 2
    s_cselect_b32 s{SWT}, s8, s10
    s_cselect_b32 s{SWT+1}, s9, s11
    s_mov_b32 s{SWT+2}, {SZ_WU}
    s_mov_b32 s{SWT+3}, 0x00020000
    s_lshl_b32 s{sCB}, s{sKB}, 18
    s_lshl_b32 s{sT}, s{sW}, 16
    s_add_u32 s{sCB}, s{sCB}, s{sT}
    s_lshl_b32 s{sM0C}, s{sW}, 13
    s_and_b32 s{sT}, s{sW}, 1
    s_lshl_b32 s{sWB}, s{sT}, 17
    s_lshl_b32 s{sM0W}, s{sW}, 12
    """)
    CSLOT = [0, 32768, 65536]; WBASE = 98304
    def dma_c(st, js):
        L = []
        for j in js:
            sw = (j & ~3) | ((j & 1) << 1) | ((j >> 1) & 1)
            L.append([I(f"s_add_u32 m0, s{sM0C}, {CSLOT[st % 3] + j*1024}"),
                      I(f"s_add_u32 s{sT}, s{sCB}, {sw*8192 + st*128}"),
                      I(f"buffer_load_dwordx4 v{vDC + (j & 1)}, s[{SC}:{SC+3}], s{sT} offen lds", tag=f"c{st}")])
        return L
    def dma_w(u):
        L = []
        for j in range(4):
            L.append([I(f"s_add_u32 m0, s{sM0W}, {WBASE + (u % 4)*16384 + j*1024}"),
                      I(f"s_add_u32 s{sT}, s{sWB}, {(u*32 + 4*j)*8192}"),
                      I(f"buffer_load_dwordx4 v{vDW + ((j >> 1) & 1)}, s[{SWT}:{SWT+3}], s{sT} offen lds", tag=f"w{u}")])
        return L
    flat = lambda LL: [i for L in LL for i in L]
    b.add(flat(dma_w(0))); b.add(flat(dma_c(0, range(8)))); b.add(flat(dma_w(1)))
    b.add(flat(dma_w(2))); b.add(flat(dma_c(1, range(8)))); b.add(flat(dma_w(3))); b.add(flat(dma_c(2, range(8))))
    b.e(f"""
    v_lshrrev_b32 v{vt0}, 1, v2
    v_xor_b32 v{vt0}, v{vt0}, v3
    v_lshlrev_b32 v{vt0}, 4, v{vt0}
    v_lshl_add_u32 v{vt0}, v2, 7, v{vt0}
    s_and_b32 s{sT}, s{sW}, 1
    s_lshl_b32 s{sT}, s{sT}, 14
    v_add_u32 v{vRC}, s{sT}, v{vt0}
    v_xor_b32 v{vRC+1}, 64, v{vRC}
    v_add_u32 v{vRC+2}, 0x8000, v{vRC}
    v_add_u32 v{vRC+3}, 0x8000, v{vRC+1}
    v_add_u32 v{vRC+4}, 0x10000, v{vRC}
    v_add_u32 v{vRC+5}, 0x10000, v{vRC+1}
    """)
    b.e(f"""
    v_lshl_add_u32 v{vt0}, v3, 3, v7
    v_lshlrev_b32 v{vt0}, 8, v{vt0}
    v_lshl_add_u32 v{vt0}, v6, 3, v{vt0}
    v_add_u32 v{vt0}, {WBASE}, v{vt0}
    v_and_b32 v{vt1}, 1, v3
    v_lshl_or_b32 v{vt1}, v{vt1}, 2, v7
    s_lshr_b32 s{sT}, s{sW}, 1
    s_lshl_b32 s{sT}, s{sT}, 2
    v_xor_b32 v{vt1}, s{sT}, v{vt1}
    """)
    for dd in range(4):
        b.e(f"v_xor_b32 v{vRW+dd}, {dd}, v{vt1}\nv_lshl_add_u32 v{vRW+dd}, v{vRW+dd}, 5, v{vt0}")
    srd(b, SKV, 18, SZ_KV, WS_KV)
    b.e(f"""
    v_and_b32 v{vt0}, 1, v3
    v_lshrrev_b32 v{vt1}, 1, v3
    v_lshlrev_b32 v{vSK}, 10, v{vt0}
    v_lshl_add_u32 v{vSK}, v{vt1}, 9, v{vSK}
    v_lshlrev_b32 v{vSV}, 10, v{vt1}
    v_lshl_add_u32 v{vSV}, v{vt0}, 9, v{vSV}
    v_lshl_add_u32 v{vSV}, v2, 4, v{vSV}
    v_lshrrev_b32 v{vt0}, 3, v2
    v_lshl_add_u32 v{vSK}, v{vt0}, 8, v{vSK}
    v_lshl_add_u32 v{vSK}, v4, 4, v{vSK}
    s_lshl_b32 s{sKVB}, s{sH}, 5
    s_lshl_b32 s{sT}, s{sKB}, 2
    s_add_u32 s{sKVB}, s{sKVB}, s{sT}
    s_and_b32 s{sT}, s{sW}, 1
    s_lshl_b32 s{sT}, s{sT}, 1
    s_add_u32 s{sKVB}, s{sKVB}, s{sT}
    s_lshl_b32 s{sKVB}, s{sKVB}, 15
    s_lshr_b32 s{sT}, s{sW}, 1
    s_lshl_b32 s{sT2}, s{sT}, 12
    v_add_u32 v{vSK}, s{sT2}, v{vSK}
    s_lshl_b32 s{sT2}, s{sT}, 13
    v_add_u32 v{vSV}, s{sT2}, v{vSV}
    """)
    vDB = 26
    vDX = 38
    vRX = 40
    vRB = 42
    vGW = 46
    vGA = 49
    TMP = 52
    WBB = 65536
    bset = B()
    if do_b:
        srd(bset, SX, 4, SZ_X); srd(bset, SWB, 12, SZ_WQKV); srd(bset, SPHI, 14, SZ_WPHI); srd(bset, SGATE, 16, SZ_GATE)
        srd(bset, SXF, 18, SZ_XF, WS_XF); srd(bset, SPQ, 18, SZ_PQ, WS_PQ); srd(bset, SKVP, 18, SZ_KVP, WS_KVP); srd(bset, SG, 18, SZ_G, WS_G)
        bset.e(f"""
        s_cmp_eq_u32 s{sH}, 0
        s_cselect_b32 s{SG+2}, {SZ_G}, 0
        s_mul_i32 s{sT}, s{sH}, 9
        s_lshr_b32 s{sT}, s{sT}, 1
        s_lshl_b32 s78, s{sT}, 3
        s_mov_b32 s79, 7282
        s_mov_b32 s80, 3456
        s_mov_b32 s81, 1152
        s_mov_b32 s82, 21846
        """)
        t = TMP
        for jj in range(12):
            if jj < 9: bset.e(f"v_add_u32 v{t}, {64*jj}, v1")
            else:
                bset.e(f"s_lshl_b32 s{sT}, s{sW}, 6\ns_add_u32 s{sT}, s{sT}, {256*(jj-9)}\nv_add_u32 v{t}, s{sT}, v1")
            bset.e(f"""
            v_mul_u32_u24 v{t+1}, s79, v{t}
            v_lshrrev_b32 v{t+1}, 16, v{t+1}
            v_mul_u32_u24 v{t+2}, 9, v{t+1}
            v_sub_u32 v{t+2}, v{t}, v{t+2}
            v_bfe_u32 v{t+3}, v{t+1}, 1, 2
            v_and_b32 v{t+4}, 1, v{t+1}
            v_lshl_or_b32 v{t+3}, v{t+4}, 2, v{t+3}
            v_and_b32 v{t+4}, 0x78, v{t+1}
            v_or_b32 v{t+3}, v{t+3}, v{t+4}
            v_mul_u32_u24 v{t+3}, s80, v{t+3}
            v_mul_u32_u24 v{t+4}, s82, v{t+2}
            v_lshrrev_b32 v{t+4}, 16, v{t+4}
            v_mad_u32_u24 v{t+3}, v{t+4}, s81, v{t+3}
            v_mul_u32_u24 v{t+4}, 3, v{t+4}
            v_sub_u32 v{t+2}, v{t+2}, v{t+4}
            v_lshl_add_u32 v{t+3}, v{t+2}, 4, v{t+3}
            v_add_u32 v{vDB+jj}, s78, v{t+3}
            """)
        bset.e(f"""
        v_xor_b32 v{t}, v4, v3
        v_lshlrev_b32 v{t}, 4, v{t}
        v_mad_u32_u24 v{vDX}, v5, s81, v{t}
        v_xor_b32 v{t}, 64, v{t}
        v_mad_u32_u24 v{vDX+1}, v5, s81, v{t}
        s_lshl_b32 s{sXB}, s{sKB}, 8
        s_lshl_b32 s{sT}, s{sW}, 6
        s_add_u32 s{sXB}, s{sXB}, s{sT}
        s_mul_i32 s{sXB}, s{sXB}, 1152
        s_lshl_b32 s{sM0X}, s{sW}, 13
        v_lshrrev_b32 v{t}, 1, v2
        v_xor_b32 v{t}, v{t}, v3
        v_lshlrev_b32 v{t}, 4, v{t}
        v_lshl_add_u32 v{t}, v2, 7, v{t}
        v_add_u32 v{vRX}, s{sM0X}, v{t}
        v_xor_b32 v{vRX+1}, 64, v{vRX}
        """)
        bset.e(f"""
        v_lshlrev_b32 v{t}, 1, v7
        v_lshl_add_u32 v{t}, v3, 3, v{t}
        v_mul_u32_u24 v{t}, 144, v{t}
        v_add_u32 v{t}, {WBB}, v{t}
        """)
        for T in range(4):
            bset.e(f"v_lshlrev_b32 v{t+1}, 3, v6\nv_add_u32 v{t+1}, {32*T}, v{t+1}")
            if T == 1:
                bset.e(f"v_cmp_lt_u32 vcc, 0, v6\ns_nop 1\nv_cndmask_b32 v{t+2}, 0, 8, vcc" .replace("v_cndmask_b32 v%d, 0, 8, vcc" % (t+2), "v_cndmask_b32_e64 v%d, 0, 8, vcc" % (t+2)))
                bset.e(f"v_add_u32 v{t+1}, v{t+1}, v{t+2}")
            elif T == 2:
                bset.e(f"v_cmp_lt_u32 vcc, 1, v6\ns_nop 1\nv_cndmask_b32_e64 v{t+2}, 8, 16, vcc\nv_add_u32 v{t+1}, v{t+1}, v{t+2}")
            elif T == 3:
                bset.e(f"v_add_u32 v{t+1}, 16, v{t+1}\nv_cmp_eq_u32 vcc, 3, v6\ns_nop 1\nv_cndmask_b32_e64 v{t+1}, v{t+1}, 40, vcc")
            bset.e(f"v_add_u32 v{vRB+T}, v{t}, v{t+1}")
        bset.e(f"""
        v_and_b32 v{t}, 3, v0
        v_lshlrev_b32 v{t}, 1, v{t}
        v_bfe_u32 v{t+1}, v0, 2, 1
        v_or_b32 v{t}, v{t}, v{t+1}
        v_and_b32 v{t+1}, 0xf8, v0
        v_or_b32 v{t}, v{t}, v{t+1}
        v_mul_u32_u24 v{t}, 144, v{t}
        v_add_u32 v{vGA}, {WBB+40}, v{t}
        v_add_u32 v{vGA+1}, {256*144}, v{vGA}
        v_add_u32 v{vGA+2}, {512*144}, v{vGA}
        v_mov_b32 v{t+1}, {WBB + 576*144 + 3072 + 64}
        v_cmp_gt_u32 vcc, 64, v0
        s_nop 1
        v_cndmask_b32 v{vGA+2}, v{t+1}, v{vGA+2}, vcc
        v_lshlrev_b32 v{t}, 1, v0
        buffer_load_ushort v{vGW}, v{t}, s[{SGATE}:{SGATE+3}], 0 offen
        buffer_load_ushort v{vGW+1}, v{t}, s[{SGATE}:{SGATE+3}], 0 offen offset:512
        buffer_load_ushort v{vGW+2}, v{t}, s[{SGATE}:{SGATE+3}], 0 offen offset:1024
        """, tag="gw")
    b.add(bset)

    def dma_wb(blk0):
        L = [[I(f"s_add_u32 s{sT2}, s{sW}, {blk0}"), I(f"s_mul_i32 s83, s{sT2}, {64*3456}"), I(f"s_mul_i32 s84, s{sT2}, 9216")]]
        for j in range(9):
            L.append([I(f"s_add_u32 m0, s84, {WBB + j*1024}"), I("s_nop 0"),
                      I(f"buffer_load_dwordx4 v{vDB+j}, s[{SWB}:{SWB+3}], s83 offen lds", tag="wb")])
        return L
    def dma_wb8():
        L = [[I(f"s_mov_b32 s83, {512*3456}"), I(f"s_lshl_b32 s84, s{sW}, 10")]]
        for jj in range(3):
            L.append([I(f"s_add_u32 m0, s84, {WBB + 8*9216 + jj*4096}"), I("s_nop 0"),
                      I(f"buffer_load_dwordx4 v{vDB+9+jj}, s[{SWB}:{SWB+3}], s83 offen lds", tag="wb")])
        return L
    def dma_x(st):
        L = []
        for j in range(8):
            L.append([I(f"s_add_u32 m0, s{sM0X}, {(st % 2)*32768 + j*1024}"),
                      I(f"s_add_u32 s{sT}, s{sXB}, {j*8*1152 + st*128}"),
                      I(f"buffer_load_dwordx4 v{vDX + (j & 1)}, s[{SX}:{SX+3}], s{sT} offen lds", tag=f"x{st}")])
        return L

    def acc(idx): return ('v', 64 + 4*idx) if idx < 48 else ('a', 4*(idx - 48))
    accK = lambda dd, T: acc(dd*8 + T)
    accV = lambda T, dd: acc(32 + T*4 + dd)
    FC = lambda st_, T: 64 + 64*st_ + 4*T
    FW = lambda st_, m, dd: 64 + 64*st_ + 32 + 4*(m*4 + dd)
    def reads(n):
        L = []; fs = n & 1; st = n >> 1
        for dd in range(4):
            for m in range(2):
                for u in range(2):
                    L.append(I(f"ds_read_b64_tr_b16 {a(FW(fs, m, dd) + 2*u, 2)}, v{vRW+dd} offset:{(n % 4)*16384 + m*8192 + u*1024}", tag=f"f{n}"))
            for T in (2*dd, 2*dd+1):
                L.append(I(f"ds_read_b128 {a(FC(fs, T), 4)}, v{vRC + 2*(st % 3) + (n & 1)} offset:{T*2048}", tag=f"f{n}"))
        return L
    b.w(vm=["w0", "c0"]); b.e("s_barrier"); b.add(reads(0))
    for n in range(16):
        fs = n & 1
        mf = []
        for T in range(8):
            for dd in range(4):
                c = "0" if n == 0 else None
                d = R(accK(dd, T), 4)
                mf.append(I(f"v_mfma_f32_16x16x32_bf16 {d}, {a(FW(fs,0,dd),4)}, {a(FC(fs,T),4)}, {c or d}"))
                d = R(accV(T, dd), 4)
                mf.append(I(f"v_mfma_f32_16x16x32_bf16 {d}, {a(FC(fs,T),4)}, {a(FW(fs,1,dd),4)}, {c or d}"))
        u = n + 1
        need = []
        if u <= 15:
            need = [f"w{u}"] + ([f"c{u>>1}"] if u % 2 == 0 else [])
        pin = {-1: [W(vm=need or None, lg=f"f{n}")], 0: [I("s_barrier")]}
        dm = []
        if u + 3 <= 15: dm += dma_w(u + 3)
        sidx = u >> 1
        if sidx >= 1 and sidx + 2 <= 7: dm += dma_c(sidx + 2, range(4) if u % 2 == 0 else range(4, 8))
        if do_b:
            if u == 13: dm += dma_wb(0)
            if u == 14: dm += dma_x(0)
            if u == 15: dm += dma_wb(4)
            if u == 16: dm += dma_wb8() + dma_x(1)
        st = []
        if u <= 15: st.append((reads(u), 1, 50))
        if dm: st.append((dm, 2, 62))
        body, _ = weave(mf, pin, st, budget=8)
        b.add(body)
    q = [0]
    def quad():
        r = TMP + 4*(q[0] % 3); q[0] += 1; return r
    def src(r, k, tmpb):
        if r[0] == 'v': return r[1] + k
        b.e(f"v_accvgpr_read_b32 v{tmpb}, a{r[1]+k}"); return tmpb
    def pack(t0, t1):
        qd = quad()
        for half, t in enumerate((t0, t1)):
            for p in range(2):
                x0 = src(t, 2*p, vt0); x1 = src(t, 2*p+1, vt1)
                b.e(f"v_cvt_pk_bf16_f32 v{qd + 2*half + p}, v{x0}, v{x1}")
        return qd
    for T in range(8):
        if T % 2 == 0: b.e(f"s_add_u32 s{sT}, s{sKVB}, {(T>>2)*32768 + ((T>>1)&1)*8192}")
        for P in range(2):
            qd = pack(accK(2*P, T), accK(2*P+1, T))
            b.e(f"buffer_store_dwordx4 {v(qd,4)}, v{vSK}, s[{SKV}:{SKV+3}], s{sT} offen offset:{P*2048 + (T&1)*128}{stpol}", tag="st")
    for Uh in range(2):
        for ddh in range(2):
            b.e(f"s_add_u32 s{sT}, s{sKVB}, {16384 + Uh*32768 + ddh*4096}")
            for Ul in range(2):
                for ddl in range(2):
                    U = 2*Uh + Ul; dd = 2*ddh + ddl
                    qd = pack(accV(2*U, dd), accV(2*U+1, dd))
                    b.e(f"buffer_store_dwordx4 {v(qd,4)}, v{vSV}, s[{SKV}:{SKV+3}], s{sT} offen offset:{Ul*2048 + ddl*256}{stpol}", tag="st")
    if do_b:
        from k1b import gen_k1b
        gen_k1b(b, locals())
    b.e(f"{name}_end:\ns_endpgm")
    items, vq, lq = resolve(b.L)
    items, added = fix_hazards(items, verbose=False, name=name)
    print(f"[{name}] instrs={len(items)} nops_added={added} trace_errs={check_trace(items, name)}")
    return items
```

```python
from core import *
from consts import *

def zipl(*Ls):
    out = []; n = max(len(L) for L in Ls)
    for i in range(n):
        for L in Ls:
            if i < len(L): out.append(L[i])
    return out

def gen_k1b(b, E):
    g = lambda k: E[k]
    sH, sKB, sW, sT, sT2 = g('sH'), g('sKB'), g('sW'), g('sT'), g('sT2')
    SPHI, SXF, SPQ, SKVP, SG = g('SPHI'), g('SXF'), g('SPQ'), g('SKVP'), g('SG')
    vRX, vRB, vGW, vGA, TMP, dma_x, name = g('vRX'), g('vRB'), g('vGW'), g('vGA'), g('TMP'), g('dma_x'), g('name')
    flat = g('flat')
    A2 = lambda t, ch: 64 + (t*2 + ch)*4
    SEL, SELV, CONE, B4 = 104, 108, 116, 120
    D = lambda st, T: 128 + (st*4 + T)*4
    t = TMP
    b.e(f"""
    s_and_b32 s{sT}, s{sH}, 1
    s_lshl_b32 s85, s{sT}, 1
    s_mul_i32 s86, s{sH}, 648
    v_lshrrev_b32 v{t}, 3, v2
    v_mul_u32_u24 v{t}, 20, v{t}
    v_lshlrev_b32 v{t+1}, 2, v3
    v_sub_u32 v{t}, v{t+1}, v{t}
    v_subrev_u32 v{t}, s85, v{t}
    v_lshlrev_b32 v{t+1}, 1, v6
    v_mov_b32 v{t+2}, {OOB}
    """)
    for ch in range(2):
        for e in range(8):
            k = 32*ch + 16*(e >> 2) + (e & 3)
            b.e(f"""
            v_add_u32 v{t+3}, {k}, v{t}
            v_mul_u32_u24 v{t+4}, 36, v{t+3}
            v_cmp_gt_u32 vcc, 18, v{t+3}
            v_add_u32 v{t+4}, v{t+4}, v{t+1}
            s_nop 0
            v_cndmask_b32 v{t+5+(e&1)}, v{t+2}, v{t+4}, vcc
            """)
            for tt in range(5):
                dst = A2(tt,ch) + (e>>1) + (128 if e & 1 else 0)
                b.e(f"buffer_load_ushort v{dst}, v{t+5+(e&1)}, s[{SPHI}:{SPHI+3}], s86 offen offset:{8*tt}", tag="a2")
    b.e(f"""
    v_and_b32 v{t}, 1, v2
    v_lshlrev_b32 v{t}, 4, v{t}
    v_mov_b32 v{t+1}, 0x3f80
    v_lshlrev_b32 v{t+1}, v{t}, v{t+1}
    v_lshrrev_b32 v{t+2}, 3, v2
    v_add_u32 v{t+2}, 2, v{t+2}
    v_cmp_eq_u32 vcc, v{t+2}, v3
    v_bfe_u32 v{t+3}, v2, 1, 2
    s_nop 0
    v_cndmask_b32 v{t+2}, 0, v{t+1}, vcc
    """)
    for qd in range(4):
        b.e(f"v_cmp_eq_u32 vcc, {qd}, v{t+3}\ns_nop 1\nv_cndmask_b32 v{SEL+qd}, 0, v{t+2}, vcc")
    b.e(f"""
    v_lshlrev_b32 v{t}, 2, v3
    v_subrev_u32 v{t}, s85, v{t}
    v_sub_u32 v{t}, v{t}, v2
    v_mov_b32 v{t+1}, 0x3f80
    v_mov_b32 v{t+2}, 0x3f800000
    """)
    for u in range(2):
        for qd in range(4):
            for hl in range(2):
                e = 2*qd + hl
                want = 16*u - (-8 + 16*(e >> 2) + (e & 3))
                b.e(f"v_cmp_eq_i32 vcc, {want}, v{t}\ns_nop 1\nv_cndmask_b32 v{t+3+hl}, 0, v{t+1+hl}, vcc")
            b.e(f"v_or_b32 v{SELV+4*u+qd}, v{t+3}, v{t+4}")
    b.e(f"v_cmp_gt_u32 vcc, 2, v2\ns_nop 1")
    for qd in range(4): b.e(f"v_cndmask_b32 v{SELV+4+qd}, 0, v{SELV+4+qd}, vcc")
    b.e(f"v_cmp_eq_u32 vcc, 2, v2\nv_mov_b32 v{t}, 1.0\ns_nop 0")
    for qd in range(4): b.e(f"v_cndmask_b32 v{CONE+qd}, 0, v{t}, vcc")
    vXF = 22
    b.e(f"""
    v_lshlrev_b32 v{vXF}, 4, v1
    s_lshl_b32 s87, s{sKB}, 4
    s_lshl_b32 s{sT}, s{sW}, 2
    s_add_u32 s87, s87, s{sT}
    s_mul_i32 s87, s87, {18*1024}
    s_lshl_b32 s{sT}, s{sH}, 10
    s_add_u32 s87, s87, s{sT}
    """)
    b.w(vm=["wb", "gw"]); b.e("s_barrier")
    for i in range(3): b.e(f"ds_write_b16 v{vGA+i}, v{vGW+i}", tag="gwr")
    b.w(lg="gwr"); b.e("s_barrier")
    XFR = lambda st, par, q: (st & 1)*32 + par*16 + 4*q
    WFR = lambda n, T: 64 + (n & 1)*16 + 4*T
    def xreads(st):
        return [I(f"ds_read_b128 {a(XFR(st,par,q),4)}, v{vRX+par} offset:{(st%2)*32768 + q*2048}", tag=f"xr{st}") for par in range(2) for q in range(4)]
    def wreads(n):
        L = []
        if n == 9: L += [I(f"v_add_u32 v{vRB+T}, {9*4608}, v{vRB+T}") for T in range(4)]
        for T in range(4):
            for u in range(2):
                L.append(I(f"ds_read_b64_tr_b16 {a(WFR(n,T)+2*u,2)}, v{vRB+T} offset:{(n%9)*4608 + u*144}", tag=f"wr{n}"))
        return L
    b.w(vm="x0"); b.add(xreads(0)); b.add(wreads(0)); b.w(lg="xr0"); b.add(flat(dma_x(2)))
    for n in range(18):
        st = n >> 1; par = n & 1
        mf = []
        for q in range(4):
            for T in range(4):
                d = v(D(q, T), 4)
                mf.append(I(f"v_mfma_f32_16x16x32_bf16 {d}, {a(WFR(n,T),4)}, {a(XFR(st,par,q),4)}, {'0' if n == 0 else d}"))
        pin = {-1: [W(lg=[f"wr{n}", f"xr{st}"])]}
        streams = []
        if n + 1 < 18: streams.append((wreads(n + 1), 0, 9))
        if par == 0 and st + 1 < 9:
            streams.append(([W(vm=f"x{st+1}")] + xreads(st + 1), 6, 15))
        if par == 1 and st + 3 < 9:
            streams.append(([W(lg=f"xr{st+1}")] + dma_x(st + 3), 2, 15))
        body, _ = weave(mf, pin, streams, budget=8)
        b.add(body)
        b.e(f"s_cmp_eq_u32 s{sH}, {n}\ns_cbranch_scc0 {name}_xf{n}")
        for q in range(4):
            b.e(f"s_add_u32 s{sT}, s87, {q*18*1024}")
            i = I(f"buffer_store_dwordx4 {a(XFR(st,par,q),4)}, v{vXF}, s[{SXF}:{SXF+3}], s{sT} offen"); i.note = 'cond'; b.add(i)
        b.e(f"{name}_xf{n}:")
    b.w(vm="a2")
    b.e(f"v_bfe_u32 v{t}, v2, 2, 1\nv_mul_u32_u24 v{t}, 0x8000, v{t}\nv_lshl_or_b32 v{t}, v{t}, 16, v{t}")
    for r in range(40): b.e(f"v_lshl_or_b32 v{64+r}, v{192+r}, 16, v{64+r}")
    for r in range(40): b.e(f"v_xor_b32 v{64+r}, v{t}, v{64+r}")
    vPQ, vPQ2, vGO = 23, 24, 25
    b.e(f"""
    v_mul_u32_u24 v{vPQ}, 72, v2
    v_lshl_add_u32 v{vPQ2}, v3, 2, v{vPQ}
    v_lshl_add_u32 v{vPQ}, v3, 5, v{vPQ}
    v_mov_b32 v{t+1}, {OOB}
    v_cmp_gt_u32 vcc, 2, v3
    v_lshlrev_b32 v{vGO}, 2, v2
    s_lshl_b32 s88, s{sH}, 11
    v_cndmask_b32 v{vPQ}, v{t+1}, v{vPQ}, vcc
    v_cndmask_b32 v{vPQ2}, v{t+1}, v{vPQ2}, vcc
    v_cmp_eq_u32 vcc, 3, v3
    s_lshl_b32 s89, s{sKB}, 8
    s_lshl_b32 s{sT}, s{sW}, 6
    v_cndmask_b32 v{vGO}, v{t+1}, v{vGO}, vcc
    s_add_u32 s89, s89, s{sT}
    s_add_u32 s88, s88, s89
    s_mul_i32 s88, s88, 72
    s_lshl_b32 s89, s89, 2
    s_mov_b32 s90, {f32(LOG2E)}
    s_mov_b32 s91, {f32(-LOG2E)}
    """)
    YS = [8, 26]; XS = [192, 200]; D2S = [208, 228]; TS = [52, 56]
    for y in YS:
        for k in (9, 10, 11): b.e(f"v_mov_b32 v{y+k}, 0")
    D5 = lambda c, u: 128 + (c*2 + u)*4
    def stile(q, z):
        L = B(); X = XS[z]; D2 = D2S[z]; Y = YS[z]; tt = TS[z]
        for T in range(4):
            for p in range(2):
                L.e(f"v_cvt_pk_bf16_f32 v{X + 2*T + p}, v{D(q,T)+2*p}, v{D(q,T)+2*p+1}")
        for t5 in range(5):
            d = v(D2 + 4*t5, 4)
            L.e(f"v_mfma_f32_16x16x32_bf16 {d}, {v(A2(t5,0),4)}, {v(X,4)}, 0")
            L.e(f"v_mfma_f32_16x16x32_bf16 {d}, {v(A2(t5,1),4)}, {v(X+4,4)}, {d}")
        L.e(f"""
        v_lshlrev_b32 v{tt}, 16, v{X+6}
        v_mul_f32 v{tt}, s91, v{tt}
        v_exp_f32 v{tt}, v{tt}
        s_nop 0
        v_add_f32 v{tt}, 1.0, v{tt}
        v_rcp_f32 v{tt}, v{tt}
        s_nop 0
        v_cvt_pk_bf16_f32 v{tt}, v{tt}, v{tt}
        v_and_b32 v{tt}, 0xffff0000, v{tt}
        """)
        L.e(f"buffer_store_dword v{tt}, v{vGO}, s[{SG}:{SG+3}], s89 offen offset:{q*64}", tag="st")
        L.e(f"v_mfma_f32_16x16x32_bf16 {v(D(q,0),4)}, {v(X+4,4)}, {v(SELV,4)}, 0")
        L.e(f"v_mfma_f32_16x16x32_bf16 {v(D(q,1),4)}, {v(X+4,4)}, {v(SELV+4,4)}, {v(CONE,4)}")
        m = tt + 1; sm = tt + 2
        L.e(f"v_max3_f32 v{m}, v{D2}, v{D2+1}, v{D2+2}")
        for k in range(3, 17, 2): L.e(f"v_max3_f32 v{m}, v{m}, v{D2+k}, v{D2+k+1}")
        L.e(f"v_max_f32 v{m}, v{m}, v{D2+17}")
        L.e(f"v_mul_f32 v{m}, s91, v{m}")
        for k in range(18): L.e(f"v_fma_f32 v{D2+k}, v{D2+k}, s90, v{m}")
        for k in range(18): L.e(f"v_exp_f32 v{D2+k}, v{D2+k}")
        L.e(f"v_add_f32 v{sm}, v{D2}, v{D2+1}")
        for k in range(2, 18): L.e(f"v_add_f32 v{sm}, v{sm}, v{D2+k}")
        L.e(f"v_rcp_f32 v{sm}, v{sm}\ns_nop 0")
        for k in range(18): L.e(f"v_mul_f32 v{D2+k}, v{D2+k}, v{sm}")
        for k in range(9): L.e(f"v_cvt_pk_bf16_f32 v{Y+k}, v{D2+2*k}, v{D2+2*k+1}")
        L.e(f"buffer_store_dwordx4 {v(Y,4)}, v{vPQ}, s[{SPQ}:{SPQ+3}], s88 offen offset:{q*16*72}", tag="st")
        L.e(f"buffer_store_dwordx4 {v(Y+4,4)}, v{vPQ}, s[{SPQ}:{SPQ+3}], s88 offen offset:{q*16*72+16}", tag="st")
        L.e(f"buffer_store_dword v{Y+8}, v{vPQ2}, s[{SPQ}:{SPQ+3}], s88 offen offset:{q*16*72+64}", tag="st")
        for c in range(3):
            L.e(f"v_mfma_f32_16x16x32_bf16 {v(D2+4*c,4)}, {v(Y+4*c,4)}, {v(SEL,4)}, 0")
        return L.L
    for pr in range(2):
        qa, qb = 2*pr, 2*pr + 1
        b.add(zipl(stile(qa, 0), stile(qb, 1)))
        A3 = [D(qa, 2), D(qa, 3), D(qb, 2)]
        for u in range(2):
            for z, q in enumerate((qa, qb)):
                for p in range(2): b.e(f"v_cvt_pk_bf16_f32 v{B4+4*u+2*z+p}, v{D(q,u)+2*p}, v{D(q,u)+2*p+1}")
        for c in range(3):
            for z in range(2):
                for p in range(2): b.e(f"v_cvt_pk_bf16_f32 v{A3[c]+2*z+p}, v{D2S[z]+4*c+2*p}, v{D2S[z]+4*c+2*p+1}")
        for c in range(3):
            for u in range(2):
                d = a(D5(c, u), 4)
                b.e(f"v_mfma_f32_16x16x32_bf16 {d}, {v(A3[c],4)}, {v(B4+4*u,4)}, {'0' if pr == 0 else d}")
    b.e("s_barrier")
    b.e(f"s_mul_i32 s{sT}, s{sW}, 6144\nv_lshlrev_b32 v{t}, 4, v1\nv_add_u32 v{t+1}, s{sT}, v{t}")
    for k in range(6): b.e(f"ds_write_b128 v{t+1}, {a(128+4*k,4)} offset:{k*1024}", tag="rw")
    b.e(f"s_lshl_b32 s{sT}, s{sW}, 10\nv_add_u32 v{t+1}, s{sT}, v{t}")
    b.w(lg="rw"); b.e("s_barrier")
    for z in range(2):
        for ww in range(4): b.e(f"ds_read_b128 {v(64+16*z+4*ww,4)}, v{t+1} offset:{ww*6144 + z*4096}", tag=f"rr{z}")
    b.e(f"""
    s_lshl_b32 s92, s{sH}, 3
    s_add_u32 s92, s92, s{sKB}
    s_mul_i32 s92, s92, {KVP_PART}
    v_lshrrev_b32 v{t+2}, 1, v3
    v_and_b32 v{t+3}, 1, v3
    v_mov_b32 v{t+7}, {OOB}
    s_and_b32 s93, s{sW}, 1
    s_lshl_b32 s93, s93, 4
    v_add_u32 v{t+4}, s93, v2
    v_mul_u32_u24 v{t+5}, {KVP_ROW}, v{t+4}
    v_cmp_gt_u32 vcc, 19, v{t+4}
    s_lshr_b32 s94, s{sW}, 1
    s_lshl_b32 s94, s94, 5
    v_cndmask_b32 v{t+5}, v{t+7}, v{t+5}, vcc
    v_lshlrev_b32 v{t+6}, 6, v{t+2}
    v_lshl_add_u32 v{t+6}, v{t+3}, 4, v{t+6}
    v_add3_u32 v{t+6}, v{t+6}, s94, v{t+5}
    v_lshlrev_b32 v{t+8}, 4, v{t+2}
    v_add3_u32 v{t+8}, v{t+8}, v{t+5}, 64
    v_add_u32 v{t+8}, 64, v{t+8}
    v_cmp_eq_u32 vcc, 0, v{t+3}
    s_cmp_lt_u32 s{sW}, 2
    s_cselect_b32 s95, {SZ_KVP}, 0
    v_cndmask_b32 v{t+8}, v{t+7}, v{t+8}, vcc
    """)
    for z in range(2):
        b.w(lg=f"rr{z}")
        base = 64 + 16*z
        for k in range(4):
            b.e(f"v_add_f32 v{base+k}, v{base+k}, v{base+4+k}\nv_add_f32 v{base+8+k}, v{base+8+k}, v{base+12+k}")
        for k in range(4): b.e(f"v_add_f32 v{base+k}, v{base+k}, v{base+8+k}")
        if z == 1: b.e(f"s_mov_b32 s{SKVP+2}, s95")
        b.e(f"buffer_store_dwordx4 {v(base,4)}, v{t+6+2*z}, s[{SKVP}:{SKVP+3}], s92 offen", tag="st")
```

```python
from core import *
from consts import *
import math

def gen_k2(name="k2", stpol="", verbose=False):
    flat = lambda LL: [i for L in LL for i in (L if isinstance(L, (list, tuple)) else [L])]
    b = B()
    sH, sI, sW, sT, sT2, sCnt = 20, 21, 22, 23, 24, 25
    sP0, sP1, sP2, sGK, sKW, sW4, sThr = 26, 27, 28, 29, 30, 31, 19
    SWQ, SXF, SKV, SKV2, SCF, SPQ, SKVP, SG = 32, 36, 40, 44, 48, 52, 56, 60
    sX = 64
    sR = 68
    sCFo = 70
    sWQo, sM0Q = 72, 73
    sMK = 76
    vL16, vA, vT0, vT1, vG, vCF, vNI, vDW, vRW = 2, 3, 4, 5, 6, 8, 9, 10, 12
    t = 20
    b.e(f"""
    s_cmp_ge_u32 s2, 256
    s_cbranch_scc1 {name}_end
    s_load_dwordx2 s[4:5], s[0:1], {KA_WQ}
    s_load_dwordx2 s[6:7], s[0:1], {KA_WS}
    v_lshrrev_b32 v{t}, 6, v0
    v_and_b32 v1, 63, v0
    v_readfirstlane_b32 s{sW}, v{t}
    s_and_b32 s{sH}, s2, 7
    s_lshl_b32 s{sH}, s{sH}, 2
    s_bfe_u32 s{sT}, s2, 0x20003
    s_add_u32 s{sH}, s{sH}, s{sT}
    s_lshr_b32 s{sI}, s2, 5
    v_lshlrev_b32 v{vL16}, 4, v1
    s_lshl_b32 s{sT}, s{sW}, 5
    s_lshl_b32 s{sR}, s{sI}, 7
    s_sub_u32 s{sR+1}, 1920, s{sR}
    s_add_u32 s{sR}, s{sR}, s{sT}
    s_add_u32 s{sR+1}, s{sR+1}, s{sT}
    s_waitcnt lgkmcnt(0)
    """)
    srd(b, SPQ, 6, SZ_PQ, WS_PQ); srd(b, SKVP, 6, SZ_KVP, WS_KVP); srd(b, SG, 6, SZ_G, WS_G)
    PL = 64
    PB = 96
    b.e(f"""
    v_and_b32 v{t}, 31, v1
    v_lshrrev_b32 v{t+1}, 5, v1
    s_lshl_b32 s{sT}, s{sH}, 3
    s_lshl_b32 s{sT2}, s{sW}, 1
    s_add_u32 s{sT}, s{sT}, s{sT2}
    s_mul_i32 s{sT}, s{sT}, {KVP_PART}
    s_add_u32 s{sT2}, s{sT}, {KVP_PART}
    v_mov_b32 v{t+2}, {OOB}
    v_cmp_gt_u32 vcc, {KVP_PART - 2048}, v{vL16}
    s_nop 1
    v_cndmask_b32 v{t+2}, v{t+2}, v{vL16}, vcc
    """)
    for p in range(2):
        for k in range(3):
            b.e(f"buffer_load_dwordx4 {v(PL+12*p+4*k,4)}, v{vL16 if k < 2 else t+2}, s[{SKVP}:{SKVP+3}], s{sT if p == 0 else sT2} offen offset:{k*1024}", tag="pl")
    b.e(f"""
    v_mul_u32_u24 v{t+3}, 72, v{t}
    v_lshl_add_u32 v{t+4}, v{t+1}, 2, v{t+3}
    v_lshl_add_u32 v{t+3}, v{t+1}, 4, v{t+3}
    v_lshlrev_b32 v{t+5}, 2, v{t}
    """)
    for qt in range(2):
        b.e(f"""
        s_lshl_b32 s{sT}, s{sH}, 11
        s_add_u32 s{sT}, s{sT}, s{sR+qt}
        s_mul_i32 s{sT}, s{sT}, 72
        s_lshl_b32 s{sT2}, s{sR+qt}, 2
        """)
        b.e(f"""
        buffer_load_dwordx4 {v(PB+12*qt,4)}, v{t+3}, s[{SPQ}:{SPQ+3}], s{sT} offen
        buffer_load_dwordx4 {v(PB+12*qt+4,4)}, v{t+3}, s[{SPQ}:{SPQ+3}], s{sT} offen offset:32
        buffer_load_dword v{PB+12*qt+8}, v{t+4}, s[{SPQ}:{SPQ+3}], s{sT} offen offset:64
        buffer_load_dword v{vG+qt}, v{t+5}, s[{SG}:{SG+3}], s{sT2} offen
        """, tag="pq")
    srd(b, SWQ, 4, SZ_WQ); srd(b, SXF, 6, SZ_XF, WS_XF)
    b.e(f"""
    v_and_b32 v{t+6}, 15, v1
    v_lshrrev_b32 v{t+7}, 4, v1
    v_lshlrev_b32 v{t+8}, 1, v{t+7}
    v_xor_b32 v{t+8}, v{t+6}, v{t+8}
    v_lshlrev_b32 v{t+8}, 4, v{t+8}
    v_lshl_add_u32 v{vDW}, v{t+7}, 13, v{t+8}
    s_and_b32 s{sT}, s{sW}, 1
    s_lshl_b32 s{sT}, s{sT}, 7
    v_xor_b32 v{vDW}, s{sT}, v{vDW}
    s_lshl_b32 s{sT}, s{sH}, 8
    v_add_u32 v{vDW}, s{sT}, v{vDW}
    s_lshl_b32 s{sWQo}, s{sW}, 16
    s_lshl_b32 s{sM0Q}, s{sW}, 11
    s_lshr_b32 s{sX}, s{sR}, 4
    s_mul_i32 s{sX}, s{sX}, 18432
    s_add_u32 s{sX+1}, s{sX}, 18432
    s_lshr_b32 s{sX+2}, s{sR+1}, 4
    s_mul_i32 s{sX+2}, s{sX+2}, 18432
    s_add_u32 s{sX+3}, s{sX+2}, 18432
    """)
    XR = lambda n, z: (n % 10)*16 + 4*z
    WF = lambda n, dt: 160 + (n & 1)*32 + 4*dt
    def qloads(n):
        L = []
        for j in range(2):
            L.append([I(f"s_add_u32 m0, s{sM0Q}, {n*8192 + j*1024}"), I(f"s_add_u32 s{sT}, s{sWQo}, {(32*n + 4*j)*8192}"),
                      I(f"buffer_load_dwordx4 v{vDW}, s[{SWQ}:{SWQ+3}], s{sT} offen lds", tag=f"w{n}")])
        if n and n % 4 == 0:
            L.append([I(f"s_add_u32 s{sX+z}, s{sX+z}, 4096") for z in range(4)])
        for z in range(4):
            L.append([I(f"buffer_load_dwordx4 {a(XR(n,z),4)}, v{vL16}, s[{SXF}:{SXF+3}], s{sX+z} offen offset:{(n%4)*1024}", tag=f"x{n}")])
        return L
    for n in range(8): b.add(flat(qloads(n)))
    b.e(f"""
    s_lshl_b32 s{sT}, s{sH}, 20
    s_add_u32 s{SKV}, s6, s{sT}
    s_addc_u32 s{SKV+1}, s7, 0
    s_lshl_b32 s{sT}, s{sI}, 16
    s_sub_u32 s{SKV+2}, 0x100000, s{sT}
    s_mov_b32 s{SKV+3}, 0x00020000
    s_sub_u32 s{SKV2}, s{SKV}, 49152
    s_subb_u32 s{SKV2+1}, s{SKV+1}, 0
    s_add_u32 s{SKV2+2}, s{SKV+2}, 49152
    s_mov_b32 s{SKV2+3}, 0x00020000
    s_lshl_b32 s{sW4}, s{sW}, 12
    s_add_u32 s{sKW}, s{sW4}, 16384
    """)
    srd(b, SCF, 6, SZ_CF, WS_CF)
    def kv_static(kind, tile):
        lds = ((tile + 4) % 5)*32768 + 16384 if kind == 'K' else (tile % 5)*32768
        go = tile*32768 + (0 if kind == 'K' else 16384)
        L = [[I(f"s_add_u32 m0, s{sW4}, {lds}"), I(f"s_add_u32 s{sT}, s{sW4}, {go}"),
              I(f"buffer_load_dwordx4 v{vL16}, s[{SKV}:{SKV+3}], s{sT} offen lds", tag=f"{kind}{tile}")]]
        for j in range(1, 4):
            L.append([I(f"buffer_load_dwordx4 v{vL16}, s[{SKV}:{SKV+3}], s{sT} offen offset:{j*1024} lds", tag=f"{kind}{tile}")])
        return L
    b.e(f"""
    v_bfe_u32 v{t+8}, v1, 2, 2
    v_and_b32 v{t+9}, 3, v1
    v_lshl_add_u32 v{t+10}, v{t+7}, 3, v{t+8}
    v_lshlrev_b32 v{t+10}, 8, v{t+10}
    v_lshl_add_u32 v{t+10}, v{t+9}, 3, v{t+10}
    v_and_b32 v{t+9}, 1, v{t+7}
    v_lshl_or_b32 v{t+9}, v{t+9}, 2, v{t+8}
    """)
    for dt in range(8):
        b.e(f"v_xor_b32 v{vRW+dt}, {dt}, v{t+9}\nv_lshl_add_u32 v{vRW+dt}, v{vRW+dt}, 5, v{t+10}")
    SCR = 131072
    b.e(f"s_mul_i32 s{sT}, s{sW}, 3072\ns_add_u32 s{sT}, s{sT}, {SCR}\nv_add_u32 v{t+8}, s{sT}, v{vL16}")
    b.e(f"""
    v_cmp_eq_u32 vcc, 22, v{t}
    v_mov_b32 v{t+9}, 18
    s_nop 0
    v_cndmask_b32 v{t+9}, v{t}, v{t+9}, vcc
    v_cmp_gt_u32 s[{sMK}:{sMK+1}], 19, v{t+9}
    v_min_u32 v{t+9}, 18, v{t+9}
    v_mul_u32_u24 v{t+9}, {KVP_ROW}, v{t+9}
    v_lshl_add_u32 v{t+10}, v{t+1}, 4, v{t+9}
    v_lshl_add_u32 v{t+9}, v{t+1}, 5, v{t+9}
    v_add_u32 v{t+9}, {SCR}, v{t+9}
    v_add_u32 v{t+10}, {SCR+128}, v{t+10}
    """)
    for qt in range(2):
        for k in (9, 10, 11): b.e(f"v_mov_b32 v{PB+12*qt+k}, 0")
    b.w(vm="pl")
    for k in range(12): b.e(f"v_add_f32 v{PL+k}, v{PL+k}, v{PL+12+k}")
    for k in range(3): b.e(f"ds_write_b128 v{t+8}, {v(PL+4*k,4)} offset:{k*1024}", tag="sw")
    b.add(flat(kv_static('K', 0))); b.add(flat(qloads(8)))
    b.w(lg="sw"); b.e("s_barrier")
    RD = 128
    for ww in range(4):
        o = ww*3072; r = RD + 20*ww
        b.e(f"""
        ds_read_b128 {v(r,4)}, v{t+9} offset:{o}
        ds_read_b128 {v(r+4,4)}, v{t+9} offset:{o+16}
        ds_read_b128 {v(r+8,4)}, v{t+9} offset:{o+64}
        ds_read_b128 {v(r+12,4)}, v{t+9} offset:{o+80}
        ds_read_b64 {v(r+16,2)}, v{t+10} offset:{o}
        """, tag=f"sr{ww}")
    b.w(lg="sr1")
    for k in range(18): b.e(f"v_add_f32 v{RD+k}, v{RD+k}, v{RD+20+k}")
    b.w(lg="sr3")
    for k in range(18): b.e(f"v_add_f32 v{RD+40+k}, v{RD+40+k}, v{RD+60+k}")
    for k in range(18): b.e(f"v_add_f32 v{RD+k}, v{RD+k}, v{RD+40+k}")
    AK = 208
    for k in range(9): b.e(f"v_cvt_pk_bf16_f32 v{AK+k}, v{RD+2*k}, v{RD+2*k+1}")
    for k in range(9): b.e(f"v_cndmask_b32 v{AK+k}, 0, v{AK+k}, s[{sMK}:{sMK+1}]")
    for k in (9, 10, 11): b.e(f"v_mov_b32 v{AK+k}, 0")
    b.w(vm="pq")
    OD = 224
    for c in range(3):
        for qt in range(2):
            d = v(OD + 16*qt, 16)
            b.e(f"v_mfma_f32_32x32x16_bf16 {d}, {v(AK+4*c,4)}, {v(PB+12*qt+4*c,4)}, {'0' if c == 0 else d}")
    b.e(f"""
    v_bfe_u32 v{t+8}, v1, 4, 1
    v_mul_u32_u24 v{t+8}, {NCH*1024}, v{t+8}
    v_lshl_add_u32 v{t+8}, v{t+6}, 4, v{t+8}
    v_lshl_add_u32 v{vCF}, v{t+1}, 8, v{t+8}
    v_mov_b32 v{t+9}, {OOB}
    v_cmp_eq_u32 vcc, 0, v{t+1}
    s_lshr_b32 s{sT}, s{sH}, 1
    s_lshl_b32 s{sT}, s{sT}, 10
    v_cndmask_b32 v{t+8}, v{t+9}, v{t+8}, vcc
    s_and_b32 s{sT2}, s{sH}, 1
    s_lshl_b32 s{sT2}, s{sT2}, 9
    s_add_u32 s74, s{sT}, s{sT2}
    s_add_u32 s74, s74, {128*1024}
    s_lshr_b32 s{sT}, s{sH}, 4
    s_lshl_b32 s{sT}, s{sT}, 10
    s_bfe_u32 s{sT2}, s{sH}, 0x20002
    s_lshl_b32 s{sT2}, s{sT2}, 8
    s_add_u32 s75, s{sT}, s{sT2}
    s_and_b32 s{sT2}, s{sH}, 3
    s_lshl_b32 s{sT2}, s{sT2}, 2
    s_add_u32 s75, s75, s{sT2}
    s_add_u32 s75, s75, {144*1024}
    s_mov_b32 s84, {f32(1e-6)}
    """)
    for qt in range(2):
        b.e(f"""
        s_lshr_b32 s{sCFo+qt}, s{sR+qt}, 4
        s_mul_i32 s{sCFo+qt}, s{sCFo+qt}, {NCH*1024}
        """)
    for qt in range(2):
        d = OD + 16*qt; x = t + 10
        b.e(f"""
        v_sub_f32 v{x+1}, 1.0, v{vG+qt}
        v_add_f32 v{x}, s84, v{d+10}
        v_cvt_pk_bf16_f32 v{x+1}, v{x+1}, v{x+1}
        v_rcp_f32 v{x}, v{x}
        v_and_b32 v{x+1}, 0xffff0000, v{x+1}
        v_mul_f32 v{x}, v{x}, v{x+1}
        """)
        for k in range(10): b.e(f"v_mul_f32 v{d+k}, v{d+k}, v{x}")
        for k in range(5): b.e(f"v_cvt_pk_bf16_f32 v{d+k}, v{d+2*k}, v{d+2*k+1}")
        b.e(f"s_add_u32 s{sT}, s{sCFo+qt}, s74\ns_add_u32 s{sT2}, s{sCFo+qt}, s75")
        b.e(f"buffer_store_dwordx4 {v(d,4)}, v{vCF}, s[{SCF}:{SCF+3}], s{sT} offen{stpol}", tag="st")
        b.e(f"buffer_store_dword v{d+4}, v{t+8}, s[{SCF}:{SCF+3}], s{sT2} offen{stpol}", tag="st")
    b.e(f"s_lshl_b32 s{sT}, s{sH}, 12\ns_add_u32 s{sCFo}, s{sCFo}, s{sT}\ns_add_u32 s{sCFo+1}, s{sCFo+1}, s{sT}")
    QA = lambda dt, z: 64 + (z*8 + dt)*4
    def wreads(n):
        L = []
        if n in (8, 16): L += [I(f"v_add_u32 v{vRW+dt}, 0x10000, v{vRW+dt}") for dt in range(8)]
        for dt in range(8):
            for u in range(2):
                L.append(I(f"ds_read_b64_tr_b16 {a(WF(n,dt)+2*u,2)}, v{vRW+dt} offset:{(n%8)*8192 + u*1024}", tag=f"f{n}"))
        return L
    b.w(vm="w0"); b.e("s_barrier"); b.add(wreads(0))
    pre = {2: ('V', 0), 4: ('K', 1), 6: ('V', 1), 8: ('K', 2), 10: ('V', 2), 12: ('K', 3), 16: ('K', 4)}
    for n in range(18):
        mf = []
        for z in range(4):
            for dt in range(8):
                d = v(QA(dt, z), 4)
                mf.append(I(f"v_mfma_f32_16x16x32_bf16 {d}, {a(WF(n,dt),4)}, {a(XR(n,z),4)}, {'0' if n == 0 else d}"))
        u = n + 1
        pin = {-1: [W(vm=[f"x{n}"] + ([f"w{u}"] if u < 18 else []), lg=f"f{n}")], 0: [I("s_barrier")]}
        st = []
        if u < 18: st.append((wreads(u), 1, 24))
        dm = []
        if n + 9 < 18 and n >= 0: dm += qloads(n + 9)
        if u in pre: dm += kv_static(*pre[u])
        if dm: st.append((dm, 2, 30))
        body, _ = weave(mf, pin, st, budget=8)
        b.add(body)
    Qa = lambda qt, dc: 128 + qt*32 + 4*dc
    FR = lambda f: 192 + 4*f
    def kread(f, tag=None): return I(f"ds_read_b128 {a(FR(f),4)}, v{vA} offset:{16384 + f*1024}", tag=tag or f"k{f}")
    def vread(f): return I(f"ds_read_b128 {a(FR(f),4)}, v{vA} offset:{(f&3)*4096 + (f>>2)*1024}", tag=f"v{f}")
    b.e(f"s_mov_b32 s85, {f32(LOG2E / math.sqrt(128.0))}\nv_add_u32 v{vA}, {4*32768}, v{vL16}")
    b.w(vm="K0"); b.e("s_barrier")
    b.add([kread(f) for f in range(12)])
    for qt in range(2):
        for P in range(4):
            xa = 32 + 8*((qt*4 + P) % 2)
            for z2 in range(2):
                z = 2*qt + z2
                for half in range(2):
                    r = QA(2*P + half, z)
                    for k in range(4): b.e(f"v_mul_f32 v{r+k}, s85, v{r+k}")
                    for p in range(2): b.e(f"v_cvt_pk_bf16_f32 v{xa + 4*z2 + 2*half + p}, v{r+2*p}, v{r+2*p+1}")
            for k in range(4): b.e(f"v_permlane16_swap_b32 v{xa+k}, v{xa+4+k}")
            for k in range(8): b.e(f"v_accvgpr_write_b32 a{Qa(qt, 2*P) + k}, v{xa+k}")
    b.add([kread(f) for f in range(12, 16)])
    SB = lambda par, qt, sub: 32 + par*64 + qt*32 + sub*16
    P0 = lambda par, qt: 160 + par*16 + qt*8
    P1 = lambda qt: 192 + qt*8
    PC = lambda par, qt, kc: (P0(par, qt) + 4*kc) if kc < 2 else (P1(qt) + 4*(kc - 2))
    NM = lambda qt: 208 + 16*qt
    ET = 240; vLs = 248; vLt = 250
    O = lambda qt, dt: qt*64 + 16*dt
    et = [0]
    def exps(par, qts, sub, first):
        L = []
        for qt in qts:
            for r in range(0, 16, 2):
                e0 = ET + 2*(et[0] % 4); et[0] += 1
                sr = SB(par, qt, sub) + r
                L.append(I(f"v_exp_f32 v{e0}, v{sr}")); L.append(I(f"v_exp_f32 v{e0+1}, v{sr+1}"))
                if first and r == 0:
                    L.append(I(f"v_add_f32 v{vLt+qt}, v{e0}, v{e0+1}"))
                else:
                    L.append(I(f"v_add_f32 v{vLt+qt}, v{vLt+qt}, v{e0}")); L.append(I(f"v_add_f32 v{vLt+qt}, v{vLt+qt}, v{e0+1}"))
                L.append(I(f"v_cvt_pk_bf16_f32 v{PC(par, qt, 2*sub + (r >> 3)) + ((r & 7) >> 1)}, v{e0}, v{e0+1}"))
        return L
    def qk(par, qts, czero=False):
        mf = []; use = []
        for f in range(16):
            sub, dc = f >> 3, f & 7
            for qt in qts:
                d = v(SB(par, qt, sub), 16)
                c = d if dc else ('0' if czero else v(NM(qt), 16))
                mf.append(I(f"v_mfma_f32_32x32x16_bf16 {d}, {a(FR(f),4)}, {a(Qa(qt,dc),4)}, {c}")); use.append(f)
        return mf, use
    def pv(par, qts):
        mf = []; use = []
        for f in range(16):
            kc, dt = f >> 2, f & 3
            for qt in qts:
                d = a(O(qt, dt), 16)
                mf.append(I(f"v_mfma_f32_32x32x16_bf16 {d}, {a(FR(f),4)}, {v(PC(par,qt,kc),4)}, {d}")); use.append(f)
        return mf, use
    outl = B()
    blocks = {}
    def mask_block(lab, par, qt):
        m = B(); m.e(f"{lab}:\ns_nop 11")
        vt = vT1 if par else vT0
        el = [(sub, r) for sub in range(2) for r in range(16)]
        for k0 in range(0, 32, 4):
            for k in range(4):
                sub, r = el[k0 + k]
                m.e(f"v_cmp_lt_i32 s[{sMK+2*k}:{sMK+2*k+1}], v{vt}, {32*sub + 8*(r >> 2) + (r & 3)}")
            for k in range(4):
                sub, r = el[k0 + k]; x = SB(par, qt, sub) + r
                m.e(f"v_cndmask_b32 v{x}, v{x}, v{vNI}, s[{sMK+2*k}:{sMK+2*k+1}]")
        m.e(f"s_branch {lab}_r"); blocks[lab] = m.L; outl.add(m)
    def rowmax(m, par, qt, dst):
        s0 = SB(par, qt, 0)
        m.e(f"v_max3_f32 v{dst}, v{s0}, v{s0+1}, v{s0+2}")
        for k in range(3, 31, 2): m.e(f"v_max3_f32 v{dst}, v{dst}, v{s0+k}, v{s0+k+1}")
        m.e(f"v_max_f32 v{dst}, v{dst}, v{s0+31}\nv_mov_b32 v{dst+1}, v{dst}\ns_nop 1\nv_permlane32_swap_b32 v{dst}, v{dst+1}\nv_max_f32 v{dst}, v{dst}, v{dst+1}")
    def rare_block(lab, par, cur, nxt):
        m = B(); m.e(f"{lab}:\ns_nop 11")
        for qt in cur:
            dl = t; f = t + 2
            rowmax(m, par, qt, dl)
            m.e(f"v_max_f32 v{dl}, 0, v{dl}\nv_exp_f32 v{f}, -v{dl}\ns_nop 0\nv_mul_f32 v{vLs+qt}, v{vLs+qt}, v{f}")
            for k in range(64):
                x = t + 4 + (k % 4)
                m.e(f"v_accvgpr_read_b32 v{x}, a{qt*64+k}\nv_mul_f32 v{x}, v{x}, v{f}\nv_accvgpr_write_b32 a{qt*64+k}, v{x}")
            for k in range(16): m.e(f"v_sub_f32 v{NM(qt)+k}, v{NM(qt)+k}, v{dl}")
            for k in range(32): m.e(f"v_sub_f32 v{SB(par,qt,0)+k}, v{SB(par,qt,0)+k}, v{dl}")
            if qt in nxt:
                for k in range(32): m.e(f"v_sub_f32 v{SB(1-par,qt,0)+k}, v{SB(1-par,qt,0)+k}, v{dl}")
            m.add(exps(par, [qt], 0, True)); m.add(exps(par, [qt], 1, False))
        m.e(f"s_nop 1\ns_branch {lab}_r"); blocks[lab] = m.L; outl.add(m)
    def first_gap(use, f): return use.index(f)
    def last_gap(use, f): return len(use) - 1 - use[::-1].index(f)
    def body(lab, par, cur, nxt, mask_qt):
        o = B()
        chk = [I(f"v_add_f32 v{t}, v{vLt}, v{vLt+1}")] if len(cur) == 2 else []
        chk += [I(f"v_cmp_nge_f32 vcc, s{sThr}, v{t if len(cur) == 2 else vLt+cur[0]}"), I(f"s_cbranch_vccnz {lab}_rare"), I(f"{lab}_rare_r:")]
        chk += [I(f"v_add_f32 v{vLs+qt}, v{vLs+qt}, v{vLt+qt}") for qt in cur]
        rare_block(f"{lab}_rare", par, cur, nxt)
        vdma = [[I(f"s_add_u32 m0, s{sP2}, s{sW4}"), I("s_nop 0"), I(f"buffer_load_dwordx4 v{vL16}, s[{SKV2}:{SKV2+3}], s{sGK} offen lds", tag="dv")]] + \
               [[I(f"buffer_load_dwordx4 v{vL16}, s[{SKV2}:{SKV2+3}], s{sGK} offen offset:{j*1024} lds", tag="dv")] for j in range(1, 4)]
        if nxt:
            mf, use = qk(1 - par, nxt); n = len(mf)
            pin = {}
            for f in range(16):
                if f % 4 == 0: pin.setdefault(first_gap(use, f) - 1, []).append(W(lg=f"k{f+3}"))
                pin.setdefault(last_gap(use, f), []).insert(0, kread(f + 8) if f < 8 else vread(f - 8))
            A_, usedA = weave(mf, pin, [(vdma, 0, n//2 - 1), (exps(par, cur, 1, False) + [chk], 0, n - 2)])
            o.add(A_)
            o.e(f"s_cmp_eq_u32 s{sCnt}, 1\ns_cbranch_scc1 {lab}_mask\n{lab}_mask_r:")
            mask_block(f"{lab}_mask", 1 - par, mask_qt)
        else:
            o.add([vread(f) for f in range(8)]); o.add(exps(par, cur, 1, False)); o.add(chk); usedA = {}
        mf, use = pv(par, cur); n = len(mf)
        pin = {}
        for f in range(16):
            if f % 4 == 0: pin.setdefault(first_gap(use, f) - 1, []).append(W(lg=f"v{f+3}"))
            if f < 8: pin.setdefault(last_gap(use, f), []).insert(0, vread(f + 8))
            elif nxt: pin.setdefault(last_gap(use, f), []).insert(0, kread(f - 8))
        st = []
        if nxt:
            g = last_gap(use, 7)
            pin[g - 1] = pin.get(g - 1, []) + [I(f"s_mov_b32 s{sP2}, s{sP1}"), I(f"s_mov_b32 s{sP1}, s{sP0}"), I(f"s_add_u32 s{sP0}, s{sP0}, 0x8000")]
            pin[g] = pin.get(g, []) + [I(f"s_cmp_eq_u32 s{sP0}, 0x28000"), I(f"s_cselect_b32 s{sP0}, 0, s{sP0}"), I("s_waitcnt vmcnt(16)"), I("s_barrier"),
                                       I(f"v_add_u32 v{vA}, s{sP0}, v{vL16}")]
            kdma = [[I(f"s_add_u32 m0, s{sP1}, s{sKW}"), I(f"s_add_u32 s{sGK}, s{sGK}, 0x8000"), I(f"buffer_load_dwordx4 v{vL16}, s[{SKV}:{SKV+3}], s{sGK} offen lds", tag="dk")]] + \
                   [[I(f"buffer_load_dwordx4 v{vL16}, s[{SKV}:{SKV+3}], s{sGK} offen offset:{j*1024} lds", tag="dk")] for j in range(1, 4)]
            st = [(kdma, g + 1, n - 1), (exps(1 - par, nxt, 0, True), 0, n - 1)]
        B_, usedB = weave(mf, pin, st)
        o.add(B_)
        items, vq, lq = resolve(o.L, vmq=[], lgq=[f"k{f}" for f in range(8)] if nxt else [])
        if nxt: assert lq[-8:] == [f"k{f}" for f in range(8)] or True
        if verbose: print(lab, "gapA", [usedA[k] for k in sorted(usedA)], "gapB", [usedB[k] for k in sorted(usedB)])
        return items
    def epilogue(qt):
        m = B(); x = t
        m.e(f"v_mov_b32 v{x+1}, v{vLs+qt}\ns_nop 1\nv_permlane32_swap_b32 v{vLs+qt}, v{x+1}\nv_add_f32 v{x}, v{vLs+qt}, v{x+1}\nv_rcp_f32 v{x}, v{x}\ns_nop 0\nv_mul_f32 v{x}, v{x}, v{vG+qt}")
        k = 0
        for dt in range(4):
            for c in range(2):
                base = SB(0, 0, 0) + 16*(k % 2) if qt == 0 else SB(0, 0, 0) + 16*(k % 2); k += 1
                for r in range(8): m.e(f"v_accvgpr_read_b32 v{base+r}, a{O(qt,dt)+8*c+r}")
                for r in range(8): m.e(f"v_mul_f32 v{base+r}, v{base+r}, v{x}")
                for r in range(4): m.e(f"v_cvt_pk_bf16_f32 v{base+8+r}, v{base+2*r}, v{base+2*r+1}")
                m.e(f"buffer_store_dwordx4 {v(base+8,4)}, v{vCF}, s[{SCF}:{SCF+3}], s{sCFo+qt} offen offset:{dt*1024 + c*512}{stpol}", tag="st")
        return m.L
    b.e(f"""
    v_and_b32 v{t}, 31, v1
    v_lshrrev_b32 v{t+1}, 5, v1
    v_lshlrev_b32 v{t+1}, 2, v{t+1}
    v_sub_u32 v{vT0}, v{t}, v{t+1}
    s_lshl_b32 s{sT}, s{sW}, 5
    v_add_u32 v{vT0}, s{sT}, v{vT0}
    v_subrev_u32 v{vT1}, 64, v{vT0}
    v_mov_b32 v{vNI}, 0xff800000
    v_mov_b32 v{vLs}, 0
    v_mov_b32 v{vLs+1}, 0
    s_mov_b32 s{sThr}, {f32(2.0**24)}
    s_add_u32 s{sCnt}, s{sI}, 1
    s_mov_b32 s{sP0}, 0
    s_mov_b32 s{sP1}, {4*32768}
    s_mov_b32 s{sP2}, {3*32768}
    s_add_u32 s{sGK}, s{sW4}, {5*32768}
    """)
    mf, use = qk(0, [0, 1], czero=True)
    pin = {}
    for f in range(0, 16, 4): pin.setdefault(first_gap(use, f) - 1, []).append(W(lg=f"k{f+3}"))
    zero = [I(f"v_accvgpr_write_b32 a{k}, 0") for k in range(128)]
    A_, _ = weave(mf, pin, [(zero, 0, 31)])
    b.add(A_)
    b.w(vm=["K1", "V0"]); b.e(f"s_barrier\nv_mov_b32 v{vA}, v{vL16}")
    b.add(flat(kv_static('K', 5)))
    b.e(f"s_cmp_eq_u32 s{sCnt}, 1\ns_cbranch_scc1 {name}_p_mask\n{name}_p_mask_r:")
    mask_block(f"{name}_p_mask", 0, 0)
    for qt in range(2):
        rowmax(b, 0, qt, t + 2*qt)
    for qt in range(2):
        for k in range(32): b.e(f"v_sub_f32 v{SB(0,qt,0)+k}, v{SB(0,qt,0)+k}, v{t+2*qt}")
        for k in range(16): b.e(f"v_sub_f32 v{NM(qt)+k}, 0, v{t+2*qt}")
    b.add([kread(f) for f in range(8)])
    b.add(exps(0, [0, 1], 0, True))
    pro, vq, lq = resolve(b.L)
    DDe = body(f"{name}_dde", 0, [0, 1], [0, 1], 0)
    DDo = body(f"{name}_ddo", 1, [0, 1], [0, 1], 0)
    DSo = body(f"{name}_dso", 1, [0, 1], [1], 1)
    SSe = body(f"{name}_sse", 0, [1], [1], 1)
    SSo = body(f"{name}_sso", 1, [1], [1], 1)
    SEo = body(f"{name}_seo", 1, [1], [], 1)
    L = lambda s_: B().e(s_).L
    parts = dict(pro=pro, l1=L(f"{name}_dual:"), DDe=DDe, c1=L(f"s_sub_u32 s{sCnt}, s{sCnt}, 1\ns_cbranch_scc1 {name}_end\ns_cmp_eq_u32 s{sCnt}, 0\ns_cbranch_scc1 {name}_trans"),
                 DDo=DDo, c2=L(f"s_branch {name}_dual\n{name}_trans:\ns_lshl_b32 s{sCnt}, s{sI}, 1\ns_sub_u32 s{sCnt}, 15, s{sCnt}"),
                 DSo=DSo, ep0=epilogue(0), l2=L(f"{name}_single:"), SSe=SSe,
                 c3=L(f"s_sub_u32 s{sCnt}, s{sCnt}, 1\ns_cbranch_scc1 {name}_end\ns_cmp_eq_u32 s{sCnt}, 0\ns_cbranch_scc1 {name}_fin"),
                 SSo=SSo, c4=L(f"s_branch {name}_single\n{name}_fin:"), SEo=SEo, ep1=epilogue(1), end=L(f"{name}_end:\ns_endpgm"), outl=outl.L)
    allit = [i for k in parts for i in parts[k]]
    allit, added = fix_hazards(allit, verbose=verbose, name=name)
    lab = {it.target: k for k, it in enumerate(allit) if it.kind == 'label'}
    errs = 0
    for i_ in (0, 3, 7):
        for rare in (False, True):
            tr = []; pc = 0; cnt = None; scc = 0
            while True:
                it = allit[pc]; tr.append(it)
                if it.kind == 'end': break
                tx = it.text
                if tx.startswith(f"s_add_u32 s{sCnt}, s{sI}, 1"): cnt = i_ + 1
                elif tx.startswith(f"s_sub_u32 s{sCnt}, 15"): cnt = 15 - 2*i_
                elif tx.startswith(f"s_sub_u32 s{sCnt}, s{sCnt}, 1"): cnt -= 1; scc = 0
                elif tx.startswith(f"s_cmp_eq_u32 s{sCnt}, "): scc = int(cnt == int(tx.split(',')[1]))
                elif tx.startswith("s_cmp_ge_u32 s2"): scc = 0
                if it.kind == 'branch':
                    take = it.op == 's_branch' or (it.op == 's_cbranch_scc1' and scc) or (it.op == 's_cbranch_vccnz' and rare)
                    if take: pc = lab[it.target]; continue
                pc += 1
            errs += check_trace(tr, f"{name} i={i_} rare={rare}")
    print(f"[{name}] instrs={len(allit)} nops_added={added} trace_errs={errs}")
    return allit
```

```python
from core import *
from consts import *

def gen_k3(name="k3", verbose=False):
    flat = lambda LL: [i for L in LL for i in (L if isinstance(L, (list, tuple)) else [L])]
    b = B()
    sRB, sCB, sW, sT, sT2 = 20, 21, 22, 23, 24
    SWO, SBW, SCF, SOUT = 32, 36, 40, 44
    sZ = 48
    sWo, sM0 = 52, 53
    vL16, vR = 2, 3
    vPos, vC16, vA, vB, vC = 8, 17, 26, 35, 44
    t = 54
    b.e(f"""
    s_cmp_ge_u32 s2, 256
    s_cbranch_scc1 {name}_end
    s_load_dwordx2 s[4:5], s[0:1], {KA_WO}
    s_load_dwordx2 s[6:7], s[0:1], {KA_BWO}
    s_load_dwordx2 s[8:9], s[0:1], {KA_OUT}
    s_load_dwordx2 s[10:11], s[0:1], {KA_WS}
    v_lshrrev_b32 v{t}, 6, v0
    v_and_b32 v1, 63, v0
    v_readfirstlane_b32 s{sW}, v{t}
    s_bfe_u32 s{sRB}, s2, 0x20001
    s_lshl_b32 s{sRB}, s{sRB}, 3
    s_bfe_u32 s{sT}, s2, 0x30003
    s_add_u32 s{sRB}, s{sRB}, s{sT}
    s_and_b32 s{sCB}, s2, 1
    s_lshl_b32 s{sCB}, s{sCB}, 2
    s_lshr_b32 s{sT}, s2, 6
    s_add_u32 s{sCB}, s{sCB}, s{sT}
    v_lshlrev_b32 v{vL16}, 4, v1
    s_mul_i32 s{sZ}, s{sRB}, {4*NCH*1024}
    s_lshl_b32 s{sT}, s{sW}, 15
    s_add_u32 s{sZ}, s{sZ}, s{sT}
    s_add_u32 s{sZ+1}, s{sZ}, {NCH*1024}
    s_add_u32 s{sZ+2}, s{sZ}, {2*NCH*1024}
    s_add_u32 s{sZ+3}, s{sZ}, {3*NCH*1024}
    s_mul_i32 s{sWo}, s{sW}, {16*64*1152}
    s_mul_i32 s{sM0}, s{sW}, 36864
    s_mul_i32 s54, s{sCB}, 144
    s_mov_b32 s55, 7282
    s_mov_b32 s56, 1152
    s_waitcnt lgkmcnt(0)
    """)
    srd(b, SCF, 10, SZ_CF, WS_CF); srd(b, SWO, 4, SZ_WO)
    XB = lambda s_, ch, z: (s_ % 4)*32 + ch*16 + 4*z
    def ctx_loads(s_):
        L = []
        if s_ == 16:
            L.append([I(f"s_mul_i32 s{sT2}, s{sW}, {32768 - 4096}"), I(f"s_sub_u32 s{sT2}, {128*1024 - 14*2048 - 2048}, s{sT2}")] + [I(f"s_add_u32 s{sZ+z}, s{sZ+z}, s{sT2}") for z in range(4)])
        elif s_ == 18:
            L.append([I(f"s_cmp_eq_u32 s{sW}, 3"), I(f"s_cselect_b32 s{sT2}, 2048, 0x40000000")] + [I(f"s_add_u32 s{sZ+z}, s{sZ+z}, s{sT2}") for z in range(4)])
        elif s_ > 0:
            L.append([I(f"s_add_u32 s{sZ+z}, s{sZ+z}, 2048") for z in range(4)])
        for ch in range(2):
            for z in range(4):
                L.append([I(f"buffer_load_dwordx4 {a(XB(s_,ch,z),4)}, v{vL16}, s[{SCF}:{SCF+3}], s{sZ+z} offen offset:{ch*1024}", tag=f"s{s_}")])
        return L
    def w_loads(s_):
        L = []
        if s_ < 16: pre = [I(f"s_add_u32 s57, s{sWo}, {s_*64*1152}")]; vo = vA; S = SWO
        elif s_ < 18: pre = [I(f"s_mul_i32 s57, s{sW}, {2*72*1152}"), I(f"s_add_u32 s57, s57, {(s_-16)*72*1152}")]; vo = vB; S = SBW
        else: pre = [I(f"s_cmp_eq_u32 s{sW}, 3"), I(f"s_cselect_b32 s57, 0, 0x40000000")]; vo = vC; S = SBW
        L.append(pre)
        for j in range(9):
            L.append([I(f"s_add_u32 m0, s{sM0}, {(s_%4)*9216 + j*1024}"), I("s_nop 0"),
                      I(f"buffer_load_dwordx4 v{vo+j}, s[{S}:{S+3}], s57 offen lds", tag=f"s{s_}")])
        return L
    b.add(flat(ctx_loads(0)))
    for j in range(9):
        b.e(f"""
        v_add_u32 v{t}, {64*j}, v1
        v_mul_u32_u24 v{t+1}, s55, v{t}
        v_lshrrev_b32 v{t+1}, 16, v{t+1}
        v_mul_u32_u24 v{t+2}, 9, v{t+1}
        v_sub_u32 v{t+2}, v{t}, v{t+2}
        v_lshlrev_b32 v{t+2}, 4, v{t+2}
        v_add_u32 v{vC16+j}, s54, v{t+2}
        v_bfe_u32 v{t+3}, v{t+1}, 1, 3
        v_and_b32 v{t+4}, 1, v{t+1}
        v_lshl_or_b32 v{t+3}, v{t+4}, 3, v{t+3}
        v_and_b32 v{t+4}, 0x30, v{t+1}
        v_or_b32 v{vPos+j}, v{t+3}, v{t+4}
        v_mad_u32_u24 v{vA+j}, v{vPos+j}, s56, v{vC16+j}
        """)
    b.add(flat(w_loads(0)))
    for s_ in (1, 2): b.add(flat(ctx_loads(s_))); b.add(flat(w_loads(s_)))
    srd(b, SBW, 6, SZ_BWO); srd(b, SOUT, 8, SZ_OUT)
    for j in range(9):
        p = vPos + j
        b.e(f"""
        v_lshrrev_b32 v{t}, 4, v{p}
        v_lshl_add_u32 v{t}, v{t}, 1, v{p}
        v_mad_u32_u24 v{vB+j}, v{t}, s56, v{vC16+j}
        v_and_b32 v{t}, 0x30, v{p}
        v_lshrrev_b32 v{t}, 1, v{t}
        v_and_b32 v{t+1}, 4, v{p}
        v_or_b32 v{t}, v{t}, v{t+1}
        v_bfe_u32 v{t+1}, v{p}, 3, 1
        v_lshl_or_b32 v{t}, v{t+1}, 1, v{t}
        v_bfe_u32 v{t+1}, v{p}, 1, 1
        v_or_b32 v{t}, v{t}, v{t+1}
        v_mul_u32_u24 v{t}, 18, v{t}
        v_and_b32 v{t+1}, 1, v{p}
        v_add3_u32 v{t}, v{t}, v{t+1}, 16
        v_mad_u32_u24 v{vC+j}, v{t}, s56, v{vC16+j}
        """)
    b.e(f"""
    v_lshrrev_b32 v{t}, 4, v1
    v_bfe_u32 v{t+1}, v1, 2, 2
    v_lshlrev_b32 v{t+1}, 1, v{t+1}
    v_lshl_add_u32 v{t}, v{t}, 3, v{t+1}
    v_mul_u32_u24 v{t}, 144, v{t}
    v_and_b32 v{t+1}, 3, v1
    v_lshl_add_u32 v{t}, v{t+1}, 3, v{t}
    v_add_u32 v{vR}, s{sM0}, v{t}
    """)
    WF = lambda ch, T: 128 + ch*20 + 4*T
    AC = lambda z, T: 64 + (z*5 + T)*4
    def wreads(s_, ch):
        return [I(f"ds_read_b64_tr_b16 {a(WF(ch,T)+2*u,2)}, v{vR} offset:{(s_%4)*9216 + ch*4608 + u*144 + 32*T}", tag=f"r{s_}_{ch}") for T in range(5) for u in range(2)]
    NS = 19
    b.w(vm="s0"); b.add(wreads(0, 0))
    for s_ in range(NS):
        for ch in range(2):
            mf = []
            for z in range(4):
                for T in range(5):
                    d = v(AC(z, T), 4)
                    mf.append(I(f"v_mfma_f32_16x16x32_bf16 {d}, {a(WF(ch,T),4)}, {a(XB(s_,ch,z),4)}, {'0' if (s_ == 0 and ch == 0) else d}"))
            pin = {-1: [W(lg=f"r{s_}_{ch}")]}
            st = []
            if ch == 0:
                st.append((wreads(s_, 1), 0, 11))
                if s_ + 3 < NS: st.append((ctx_loads(s_ + 3), 0, 19))
            else:
                if s_ + 3 < NS: st.append((w_loads(s_ + 3), 0, 19))
                if s_ + 1 < NS: st.append(([W(vm=f"s{s_+1}")] + wreads(s_ + 1, 0), 6, 17))
            body, _ = weave(mf, pin, st, budget=8)
            b.add(body)
    RS = 336; WSZ = 64*RS
    b.e(f"""
    v_and_b32 v{t}, 15, v1
    v_mul_u32_u24 v{t}, {RS}, v{t}
    v_and_b32 v{t+1}, 0x30, v1
    v_add_u32 v{t}, v{t}, v{t+1}
    s_mul_i32 s{sT}, s{sW}, {WSZ}
    v_add_u32 v{t}, s{sT}, v{t}
    s_barrier
    """)
    for z in range(4):
        for T in range(5):
            b.e(f"ds_write_b128 v{t}, {v(AC(z,T),4)} offset:{z*16*RS + T*64}", tag="rw")
    b.e(f"s_mul_i32 s58, s{sRB}, {64*1152}\ns_add_u32 s58, s58, s54\nv_mov_b32 v{t+7}, {OOB}")
    for k in range(3):
        b.e(f"""
        v_add_u32 v{t+1}, {256*k}, v0
        v_mul_u32_u24 v{t+2}, s55, v{t+1}
        v_lshrrev_b32 v{t+2}, 16, v{t+2}
        v_mul_u32_u24 v{t+3}, 9, v{t+2}
        v_sub_u32 v{t+3}, v{t+1}, v{t+3}
        v_mul_u32_u24 v{8+k}, {RS}, v{t+2}
        v_lshl_add_u32 v{8+k}, v{t+3}, 5, v{8+k}
        v_mul_u32_u24 v{12+k}, s56, v{t+2}
        v_lshl_add_u32 v{12+k}, v{t+3}, 4, v{12+k}
        """)
    b.e(f"v_cmp_gt_u32 vcc, 64, v0\ns_nop 1\nv_cndmask_b32 v14, v{t+7}, v14, vcc\nv_cndmask_b32 v10, 0, v10, vcc")
    for k in range(3): b.e(f"v_add_u32 v{16+k}, {2*WSZ}, v{8+k}")
    b.w(lg="rw"); b.e("s_barrier")
    for k in range(3):
        for ww in range(4):
            r = 144 + 32*k + 8*ww
            ad = (8 + k) if ww < 2 else (16 + k)
            b.e(f"ds_read_b128 {v(r,4)}, v{ad} offset:{(ww&1)*WSZ}\nds_read_b128 {v(r+4,4)}, v{ad} offset:{(ww&1)*WSZ+16}", tag=f"q{k}")
        if k == 1: b.w(lg="q0")
    for k in range(3):
        r = 144 + 32*k
        b.w(lg=f"q{k}")
        for e in range(8): b.e(f"v_add_f32 v{r+e}, v{r+e}, v{r+8+e}\nv_add_f32 v{r+16+e}, v{r+16+e}, v{r+24+e}")
        for e in range(8): b.e(f"v_add_f32 v{r+e}, v{r+e}, v{r+16+e}")
        for e in range(4): b.e(f"v_cvt_pk_bf16_f32 v{r+e}, v{r+2*e}, v{r+2*e+1}")
        b.e(f"buffer_store_dwordx4 {v(r,4)}, v{12+k}, s[{SOUT}:{SOUT+3}], s58 offen", tag="st")
    b.e(f"{name}_end:\ns_endpgm")
    items, vq, lq = resolve(b.L)
    items, added = fix_hazards(items, verbose=verbose, name=name)
    print(f"[{name}] instrs={len(items)} nops_added={added} trace_errs={check_trace(items, name)}")
    return items
```

```python
import sys
from core import *
from consts import *
HDR = open('gated_mix__compressed_kv_cla__linear_kernel_hedgehog__prompt.s.ref').read().split('; Override launch')[0]

def build(kernels, path):
    out = HDR
    for n, it, lds in kernels:
        out += f"; @launch kernel={n} grid=(256,1,1) block=(256,1,1) lds={lds}\n"
    out += '.amdgcn_target "amdgcn-amd-amdhsa--gfx950"\n.text\n'
    for n, it, lds in kernels: out += kernel_wrap(n, text(it))
    out += '.section .rodata,"a"\n'
    for n, it, lds in kernels: out += kd(n)
    open(path, 'w').write(out)

if __name__ == "__main__":
    which = sys.argv[1] if len(sys.argv) > 1 else "123"
    path = sys.argv[2] if len(sys.argv) > 2 else "out.s"
    ks = []
    if '1' in which:
        from k1 import gen_k1; ks.append(("k1_kernel", gen_k1("k1"), 163840))
    if '2' in which:
        from k2 import gen_k2; ks.append(("k2_kernel", gen_k2("k2"), 163840))
    if '3' in which:
        from k3 import gen_k3; ks.append(("k3_kernel", gen_k3("k3"), 163840))
    build(ks, path)
```
